```python
import torch

def _softmax(x, axis=-1):
    return torch.softmax(x, dim=axis)
def _gelu(x):
    return torch.nn.functional.gelu(x, approximate="tanh")
def _silu(x):
    return torch.nn.functional.silu(x)
def _sigmoid(x):
    return torch.sigmoid(x)
def _layernorm(x, axis=-1, eps=1e-5):
    m = x.mean(dim=axis, keepdim=True)
    v = x.var(dim=axis, keepdim=True, unbiased=False)
    return (x - m) / torch.sqrt(v + eps)
def _scatter_add(tgt, idx, src, axis=0):
    return tgt.clone().index_add_(axis, idx, src)
def _segment_sum(src, seg, n):
    out = torch.zeros((n,) + src.shape[1:], dtype=src.dtype)
    return out.index_add_(0, seg, src)
def _pad(x, pw):
    flat = tuple(v for pair in reversed(pw) for v in pair)
    return torch.nn.functional.pad(x, flat)

kernel_name = 'standalone__edge_featured_mpnn_gatedgcn__graph'

def setup_inputs():

    _w = (lambda a: (lambda t: t.to(torch.bfloat16) if t.is_floating_point() else t)(torch.as_tensor(a)))
    N, deg, D, De = 12500, 32, 128, max(4, 1)
    E = N * deg
    return {
        "x": _w((lambda *s: torch.randn(*s, dtype=torch.bfloat16) * 0.4)(N, D)),
        "e_attr": _w((lambda *s: torch.randn(*s, dtype=torch.bfloat16) * 0.8)(E, De)),
        "src": _w((lambda lo, hi, *s: torch.randint(lo, hi, s))(0, N, E).to(torch.int64)),
        "dst": _w((lambda lo, hi, *s: torch.randint(lo, hi, s))(0, N, E).to(torch.int64)),
        "w_a": _w((lambda *s: torch.randn(*s, dtype=torch.bfloat16) * 0.4)(D, D)),
        "w_b": _w((lambda *s: torch.randn(*s, dtype=torch.bfloat16) * 0.4)(D, D)),
        "w_c": _w((lambda *s: torch.randn(*s, dtype=torch.bfloat16) * 0.8)(De, D)),
        "w_u": _w((lambda *s: torch.randn(*s, dtype=torch.bfloat16) * 0.05)(D, D)),
        "w_v": _w((lambda *s: torch.randn(*s, dtype=torch.bfloat16) * 0.05)(D, D)),
    }

def reference(x, e_attr, src, dst, w_a, w_b, w_c, w_u, w_v):
    N, D = x.shape
    hv = x @ w_v
    g = x[dst] @ w_a + x[src] @ w_b + e_attr @ w_c
    eta = _sigmoid(g)
    denom = _segment_sum(eta, dst, N) + 1e-6
    eta_n = eta / denom[dst]
    agg = _segment_sum(eta_n * hv[src], dst, N)
    z = x @ w_u + agg
    relu_z = torch.where(z > 0, z, 0 * z)
    return x + relu_z
```

```python
import sys, struct

N = 12500
E = 400000
NPB = 98
NBK = 128
NCH = 250
CHE = 1600
NGEMM = 196
TS = 0x310000
WS_REC = 0x800000
REC_STRIDE = 32768
WS_OFF = 0x1000000
LOG2E = 1.4426950408889634
SHIFT = 40

def f32(x):
    return "0x%08x" % struct.unpack("<I", struct.pack("<f", x))[0]

class A:
    def __init__(self):
        self.l = []
    def __call__(self, s=""):
        for line in s.split("\n"):
            line = line.strip()
            if not line:
                continue
            if line.endswith(":"):
                self.l.append(line)
            else:
                self.l.append("    " + line)
    def text(self):
        return "\n".join(self.l) + "\n"

def vr(b, n):
    return f"v[{b}:{b+n-1}]" if n > 1 else f"v{b}"
def sr(b, n):
    return f"s[{b}:{b+n-1}]" if n > 1 else f"s{b}"

def srd(a, d, ptr, size, add=None, stride=0):
    if add is None:
        a(f"s_mov_b32 s{d}, s{ptr}")
        a(f"s_and_b32 s{d+1}, s{ptr+1}, 0xffff")
    else:
        a(f"s_add_u32 s{d}, s{ptr}, {add}")
        a(f"s_addc_u32 s{d+1}, s{ptr+1}, 0")
        a(f"s_and_b32 s{d+1}, s{d+1}, 0xffff")
    if stride:
        a(f"s_or_b32 s{d+1}, s{d+1}, {hex(stride << 16)}")
    a(f"s_mov_b32 s{d+2}, {size}")
    a(f"s_mov_b32 s{d+3}, 0x00020000")

def wave_scan(a, v):
    for sh in (1, 2, 4, 8):
        a("s_nop 1")
        a(f"v_add_u32_dpp v{v}, v{v}, v{v} row_shr:{sh} row_mask:0xf bank_mask:0xf bound_ctrl:0")
    a("s_nop 1")
    a(f"v_add_u32_dpp v{v}, v{v}, v{v} row_bcast:15 row_mask:0xa bank_mask:0xf")
    a("s_nop 1")
    a(f"v_add_u32_dpp v{v}, v{v}, v{v} row_bcast:31 row_mask:0xc bank_mask:0xf")

def gemm_lane_addrs(a, vl, vW, vX, vA, vB, t0, t1):
    a(f"v_lshrrev_b32 v{t0}, 3, v{vl}")
    a(f"v_and_b32 v{t1}, 2, v{t0}")
    a(f"v_and_b32 v{vW}, 7, v{vl}")
    a(f"v_xor_b32 v{vW}, v{vW}, v{t1}")
    a(f"v_lshlrev_b32 v{vW}, 4, v{vW}")
    a(f"v_lshl_or_b32 v{vW}, v{t0}, 8, v{vW}")
    a(f"v_lshrrev_b32 v{t0}, 4, v{vl}")
    a(f"v_and_b32 v{t1}, 15, v{vl}")
    a(f"v_xor_b32 v{vX}, v{t1}, v{t0}")
    a(f"v_lshlrev_b32 v{vX}, 4, v{vX}")
    a(f"v_lshl_or_b32 v{vA}, v{t1}, 8, v{vX}")
    a(f"v_lshl_or_b32 v{vX}, v{t0}, 8, v{vX}")
    a(f"v_bfe_u32 v{t1}, v{vl}, 2, 2")
    a(f"v_lshl_add_u32 v{vB}, v{t0}, 3, v{t1}")
    a(f"v_lshlrev_b32 v{vB}, 7, v{vB}")
    a(f"v_and_b32 v{t1}, 2, v{t1}")
    a(f"v_and_b32 v{t0}, 1, v{t0}")
    a(f"v_lshl_or_b32 v{t1}, v{t0}, 2, v{t1}")
    a(f"v_bfe_u32 v{t0}, v{vl}, 1, 1")
    a(f"v_xor_b32 v{t0}, v{t0}, v{t1}")
    a(f"v_lshl_or_b32 v{vB}, v{t0}, 4, v{vB}")
    a(f"v_and_b32 v{t0}, 1, v{vl}")
    a(f"v_lshl_or_b32 v{vB}, v{t0}, 3, v{vB}")

def gen_k1(a):
    a("k1_kernel:")
    a(f"s_cmp_ge_u32 s2, {NGEMM + NCH}")
    a("s_cbranch_scc1 K1_END")
    a(f"s_cmp_ge_u32 s2, {NGEMM}")
    a("s_cbranch_scc1 K1_PART")
    a("s_load_dwordx2 s[4:5], s[0:1], 0")
    a("s_load_dwordx2 s[6:7], s[0:1], 40")
    a("s_load_dwordx2 s[28:29], s[0:1], 64")
    a("s_load_dwordx2 s[30:31], s[0:1], 88")
    vl, vW, vX, vA, vB, t0, t1 = 1, 2, 3, 4, 5, 6, 7
    a(f"v_and_b32 v{vl}, 63, v0")
    a(f"v_lshrrev_b32 v{t0}, 6, v0")
    a("s_and_b32 s33, s2, 1")
    a(f"v_readfirstlane_b32 s32, v{t0}")
    a("s_lshr_b32 s34, s2, 1")
    gemm_lane_addrs(a, vl, vW, vX, vA, vB, t0, t1)
    a(f"v_xor_b32 v8, 64, v{vW}")
    a(f"v_xor_b32 v9, 64, v{vX}")
    a(f"v_xor_b32 v10, 0x80, v{vX}")
    a(f"v_xor_b32 v11, 0xc0, v{vX}")
    a("s_lshl_b32 s35, s32, 12")
    a("s_lshl_b32 s36, s33, 7")
    a("s_add_u32 s36, s36, s35")
    a("s_add_u32 s37, s36, 2048")
    a("s_lshl_b32 s38, s34, 15")
    a("s_add_u32 s38, s38, s35")
    a("s_lshl_b32 s39, s32, 11")
    a("s_waitcnt lgkmcnt(0)")
    srd(a, 8, 4, N * 256)
    srd(a, 12, 6, 32768)
    srd(a, 16, 28, 32768)
    a("s_mul_i32 s40, s33, %d" % TS)
    srd(a, 20, 30, N * 256, add="s40")
    a("s_mov_b32 m0, s39")
    a("s_add_u32 s41, s39, 1024")
    a(f"buffer_load_dwordx4 v{vW}, s[12:15], s36 offen lds")
    a("s_mov_b32 m0, s41")
    a("s_add_u32 s41, s39, 16384")
    a("buffer_load_dwordx4 v8, s[12:15], s37 offen lds")
    a("s_mov_b32 m0, s41")
    a("s_add_u32 s41, s39, 17408")
    a(f"buffer_load_dwordx4 v{vW}, s[16:19], s36 offen lds")
    a("s_mov_b32 m0, s41")
    a("s_add_u32 s41, s35, 32768")
    a("buffer_load_dwordx4 v8, s[16:19], s37 offen lds")
    xr = [vX, 9, 10, 11]
    for i in range(4):
        a("s_mov_b32 m0, s41")
        a("s_add_u32 s41, s41, 1024")
        a(f"buffer_load_dwordx4 v{xr[i]}, s[8:11], s38 offen lds")
        if i < 3:
            a("s_add_u32 s38, s38, 1024")
    a("s_sub_u32 s38, s38, 3072")
    a("s_add_u32 s41, s35, 32768")
    a(f"v_add_u32 v{vA}, s41, v{vA}")
    for st in range(1, 4):
        a(f"v_xor_b32 v{11+st}, {64*st}, v{vA}")
    for q in range(1, 4):
        a(f"v_xor_b32 v{14+q}, {32*q}, v{vB}")
    aA = [vA, 12, 13, 14]
    aB = [vB, 15, 16, 17]
    a(f"v_lshrrev_b32 v{t0}, 4, v{vl}")
    a(f"v_and_b32 v{t1}, 15, v{vl}")
    a(f"v_lshlrev_b32 v{t1}, 4, v{t1}")
    a(f"v_lshl_or_b32 v18, v{t0}, 10, v{t1}")
    a("s_waitcnt vmcnt(0)")
    a("s_barrier")
    XA = 20
    for st in range(4):
        a(f"ds_read_b128 {vr(XA+4*st,4)}, v{aA[st]}")
    WB = 36
    ACC = 68
    seq = [(st, m) for st in range(4) for m in range(2)]
    def wreads_half(n):
        st, m = seq[n]
        base = WB + 16 * (n & 1)
        for q in range(4):
            for u in range(2):
                a(f"ds_read_b64_tr_b16 {vr(base+4*q+2*u,2)}, v{aB[q]} offset:{m*16384+st*4096+u*512}")
    wreads_half(0)
    for n, (st, m) in enumerate(seq):
        if n + 1 < len(seq):
            a("s_waitcnt lgkmcnt(4)")
            wreads_half(n + 1)
            a("s_waitcnt lgkmcnt(8)")
        else:
            a("s_waitcnt lgkmcnt(0)")
        base = WB + 16 * (n & 1)
        for q in range(4):
            d = ACC + 16 * m + 4 * q
            c = "0" if st == 0 else vr(d, 4)
            a(f"v_mfma_f32_16x16x32_bf16 {vr(d,4)}, {vr(XA+4*st,4)}, {vr(base+4*q,4)}, {c}")
    a(f"s_mov_b32 s42, {f32(-LOG2E)}")
    a("s_mov_b32 s43, s42")
    a("s_nop 1")
    for i in range(8):
        a(f"v_pk_mul_f32 {vr(ACC+2*i,2)}, {vr(ACC+2*i,2)}, s[42:43]")
    for r in range(4):
        o = 20 + 4 * r
        a(f"v_cvt_pk_bf16_f32 v{o}, v{ACC+r}, v{ACC+4+r}")
        a(f"v_cvt_pk_bf16_f32 v{o+1}, v{ACC+8+r}, v{ACC+12+r}")
        a(f"v_cvt_pk_bf16_f32 v{o+2}, v{ACC+16+r}, v{ACC+20+r}")
        a(f"v_cvt_pk_bf16_f32 v{o+3}, v{ACC+24+r}, v{ACC+28+r}")
        a(f"buffer_store_dwordx4 {vr(o,4)}, v18, s[20:23], s38 offen offset:{256*r}")
    a("s_or_b32 s41, s34, s32")
    a("s_cmp_lg_u32 s41, 0")
    a("s_cbranch_scc1 K1_END")
    a(f"s_mov_b32 s22, {(N+1)*256}")
    a(f"s_mov_b32 s41, {N*256}")
    a("v_mov_b32 v36, 0x70007000")
    a("v_mov_b32 v37, 0x70007000")
    a("v_mov_b32 v38, 0")
    a("v_mov_b32 v39, 0")
    a("s_mov_b64 exec, 0xffff")
    a(f"buffer_store_dwordx4 v[36:39], v18, s[20:23], s41 offen")
    a("s_endpgm")
    a("K1_PART:")
    HIST, START, RECL = 0, 512, 1024
    a("s_load_dwordx2 s[4:5], s[0:1], 8")
    a("s_load_dwordx4 s[28:31], s[0:1], 16")
    a("s_load_dwordx2 s[6:7], s[0:1], 88")
    a(f"s_sub_u32 s32, s2, {NGEMM}")
    a(f"s_mul_i32 s33, s32, {CHE*4}")
    a("s_lshl_b32 s34, s33, 1")
    a("v_lshlrev_b32 v1, 4, v0")
    a("v_lshlrev_b32 v2, 5, v0")
    a("v_lshlrev_b32 v3, 2, v0")
    a("v_mov_b32 v40, 0")
    a("v_mov_b32 v41, 1")
    a(f"v_cmp_gt_u32 s[36:37], 64, v0")
    a(f"s_movk_i32 s35, {CHE//4}")
    a(f"v_cmp_gt_u32 s[38:39], s35, v0")
    a("s_movk_i32 s35, 128")
    a(f"v_cmp_gt_u32 vcc, s35, v0")
    a("s_mov_b64 exec, vcc")
    a(f"ds_write_b32 v3, v40 offset:{HIST}")
    a("s_mov_b64 exec, s[38:39]")
    a("s_waitcnt lgkmcnt(0)")
    srd(a, 8, 30, E * 4)
    srd(a, 12, 28, E * 4)
    srd(a, 16, 4, E * 8)
    a("buffer_load_dwordx4 v[4:7], v1, s[8:11], s33 offen")
    a("buffer_load_dwordx4 v[8:11], v1, s[12:15], s33 offen")
    a("buffer_load_dwordx4 v[12:15], v2, s[16:19], s34 offen")
    a("buffer_load_dwordx4 v[16:19], v2, s[16:19], s34 offen offset:16")
    a("s_lshl_b32 s35, s32, 15")
    a(f"s_add_u32 s35, s35, {WS_REC}")
    srd(a, 20, 6, 0, add="s35")
    srd(a, 24, 6, NBK * 1024, add=hex(WS_OFF))
    a("s_movk_i32 s35, -98")
    a("s_barrier")
    a("s_waitcnt vmcnt(3)")
    for j in range(4):
        a(f"v_mul_u32_u24 v{20+j}, 10700, v{4+j}")
        a(f"v_lshrrev_b32 v{20+j}, 20, v{20+j}")
        a(f"v_lshlrev_b32 v{24+j}, 2, v{20+j}")
        a(f"ds_add_rtn_u32 v{28+j}, v{24+j}, v41 offset:{HIST}")
    for j in range(4):
        a(f"v_mad_i32_i24 v{20+j}, v{20+j}, s35, v{4+j}")
        a(f"v_lshlrev_b32 v{33+2*j}, 8, v{20+j}")
    a("s_waitcnt vmcnt(2)")
    for j in range(4):
        a(f"v_mov_b32 v{32+2*j}, v{8+j}")
    a("s_mov_b64 exec, -1")
    a("v_and_b32 v42, 63, v0")
    a("v_lshlrev_b32 v42, 3, v42")
    a("s_waitcnt lgkmcnt(0)")
    a("s_barrier")
    a(f"ds_read_b64 v[44:45], v42 offset:{HIST}")
    a("s_waitcnt lgkmcnt(0)")
    a("v_add_u32 v46, 3, v44")
    a("v_add_u32 v47, 3, v45")
    a("v_and_b32 v46, -4, v46")
    a("v_and_b32 v47, -4, v47")
    a("v_add_u32 v48, v46, v47")
    a("v_mov_b32 v49, v48")
    wave_scan(a, 49)
    a("v_sub_u32 v50, v49, v48")
    a("v_add_u32 v51, v50, v46")
    a("v_readlane_b32 s40, v49, 63")
    a(f"ds_write_b64 v42, v[50:51] offset:{START}")
    a("s_mov_b64 exec, s[38:39]")
    for j in range(4):
        a(f"ds_read_b32 v{20+j}, v{24+j} offset:{START}")
    a("s_lshl_b32 s22, s40, 4")
    a("s_mov_b64 exec, s[36:37]")
    a("v_lshl_or_b32 v52, v44, 16, v50")
    a("v_lshl_or_b32 v53, v45, 16, v51")
    a("v_lshlrev_b32 v54, 8, v42")
    a("s_lshl_b32 s41, s32, 2")
    a("buffer_store_dword v52, v54, s[24:27], s41 offen")
    a("buffer_store_dword v53, v54, s[24:27], s41 offen offset:1024")
    a("s_mov_b64 exec, s[38:39]")
    for j in range(4):
        a(f"s_waitcnt lgkmcnt({3-j})" if j else "s_waitcnt vmcnt(2) lgkmcnt(3)")
        a(f"v_add_lshl_u32 v{20+j}, v{20+j}, v{28+j}, 4")
    for j in range(4):
        a(f"ds_write2_b64 v{20+j}, {vr(12+2*j,2)}, {vr(32+2*j,2)} offset0:{RECL//8} offset1:{RECL//8+1}")
    a("s_mov_b64 exec, -1")
    a("s_waitcnt lgkmcnt(0)")
    a("s_barrier")
    for i in range(4):
        a(f"ds_read_b128 {vr(4+4*i,4)}, v1 offset:{RECL+8192*i}" if i < 3 else
          f"ds_read_b128 {vr(4+4*i,4)}, v1 offset:{RECL+8192*i}")
    a("s_movk_i32 s41, 0x2000")
    a("s_movk_i32 s42, 0x4000")
    a("s_movk_i32 s43, 0x6000")
    so = ["0", "s41", "s42", "s43"]
    for i in range(4):
        a(f"s_waitcnt lgkmcnt({3-i})")
        a(f"buffer_store_dwordx4 {vr(4+4*i,4)}, v1, s[20:23], {so[i]} offen")
    a("K1_END:")
    a("s_endpgm")

DEN, NUM, ZERO, HIST, FLAG, START, AP, USTG, REC = 0, 25344, 50688, 50944, 51456, 51712, 52224, 80896, 95232
K2_LDS = 163072
ZEND = 51472
CAPT = 2112
KMAX = 9

def gen_k2(a):
    a("k2_kernel:")
    a("s_cmp_ge_u32 s2, 256")
    a("s_cbranch_scc1 K2_END")
    a("s_load_dwordx2 s[4:5], s[0:1], 0")
    a("s_load_dwordx2 s[6:7], s[0:1], 32")
    a("s_load_dwordx4 s[40:43], s[0:1], 48")
    a("s_load_dwordx2 s[44:45], s[0:1], 72")
    a("s_load_dwordx2 s[46:47], s[0:1], 88")
    sWV, sSL, sBK = 36, 37, 38
    vl = 1; vbase = 2; vrem = 3; XF = 4
    vt16 = 8
    t0, t1 = 9, 10
    a(f"v_and_b32 v{vl}, 63, v0")
    a(f"v_lshrrev_b32 v{t0}, 6, v0")
    a(f"s_bfe_u32 s{sSL}, s2, 0x10002")
    a(f"v_readfirstlane_b32 s{sWV}, v{t0}")
    a("s_lshr_b32 s3, s2, 3")
    a("s_lshl_b32 s3, s3, 2")
    a(f"s_and_b32 s{sBK}, s2, 3")
    a(f"s_or_b32 s{sBK}, s{sBK}, s3")
    a(f"v_and_b32 v{vbase}, -4, v0")
    a(f"v_lshlrev_b32 v{vt16}, 4, v0")
    vW, vX, vA, vB = 11, 12, 13, 14
    gemm_lane_addrs(a, vl, vW, vX, vA, vB, t0, t1)
    a(f"s_lshl_b32 s48, s{sBK}, 10")
    a(f"s_add_u32 s48, s48, {WS_OFF}")
    a(f"s_mul_i32 s49, s{sSL}, {TS}")
    a(f"s_mul_i32 s50, s{sBK}, {NPB*256}")
    a(f"s_lshl_b32 s51, s{sSL}, 7")
    a(f"s_add_u32 s52, s50, s51")
    a(f"s_lshr_b32 s53, s{sWV}, 1")
    a(f"s_and_b32 s54, s{sWV}, 1")
    a("s_waitcnt lgkmcnt(0)")
    srd(a, 32, 46, NCH * 4, add="s48")
    a(f"buffer_load_dword v{vrem}, v{vbase}, s[32:35], 0 offen")
    srd(a, 8, 4, N * 256)
    a("s_cmp_eq_u32 s54, 0")
    a("s_cselect_b32 s6, s6, s42")
    a("s_cselect_b32 s7, s7, s43")
    srd(a, 12, 6, 32768)
    WL = REC; XL = REC + 32768
    a("s_lshl_b32 s55, s53, 12")
    a("s_add_u32 s56, s55, s51")
    a("s_lshl_b32 s57, s53, 11")
    a("s_lshl_b32 s58, s54, 14")
    a("s_add_u32 s57, s57, s58")
    a(f"s_add_u32 s57, s57, {WL}")
    a("s_mov_b32 m0, s57")
    a(f"v_xor_b32 v{t0}, 64, v{vW}")
    a(f"buffer_load_dwordx4 v{vW}, s[12:15], s56 offen lds")
    a("s_add_u32 s57, s57, 1024")
    a("s_mov_b32 m0, s57")
    a("s_add_u32 s56, s56, 2048")
    a(f"buffer_load_dwordx4 v{t0}, s[12:15], s56 offen lds")
    a("s_lshl_b32 s58, s54, 11")
    a("s_add_u32 s56, s55, s58")
    a(f"s_add_u32 s57, s56, {XL}")
    a("s_add_u32 s56, s56, s50")
    a("s_lshl_b32 s58, s54, 7")
    a(f"v_xor_b32 v{t0}, s58, v{vX}")
    a(f"v_xor_b32 v{t1}, 64, v{t0}")
    a("s_mov_b32 m0, s57")
    a("s_add_u32 s57, s57, 1024")
    a(f"buffer_load_dwordx4 v{t0}, s[8:11], s56 offen lds")
    a("s_mov_b32 m0, s57")
    a("s_add_u32 s56, s56, 1024")
    a(f"buffer_load_dwordx4 v{t1}, s[8:11], s56 offen lds")
    a(f"v_lshrrev_b32 v{t0}, 3, v0")
    a(f"v_and_b32 v{t1}, 7, v0")
    a(f"v_lshlrev_b32 v{t1}, 4, v{t1}")
    vOUT = 15
    a(f"v_lshl_or_b32 v{vOUT}, v{t0}, 8, v{t1}")
    a(f"buffer_load_dwordx4 {vr(XF,4)}, v{vOUT}, s[8:11], s52 offen")
    srd(a, 16, 40, 1024)
    a(f"v_lshlrev_b32 v{t0}, 1, v{vl}")
    WC = 16
    for m in range(4):
        a(f"buffer_load_ushort v{WC+m}, v{t0}, s[16:19], s51 offen offset:{256*m}")
    srd(a, 20, 44, N * 256)
    srd(a, 24, 46, (N + 1) * 256, add="s49", stride=256)
    srd(a, 28, 46, NCH * REC_STRIDE, add=hex(WS_REC))
    Z = 20
    for i in range(4):
        a(f"v_mov_b32 v{Z+i}, 0")
    for i in range(3):
        a(f"ds_write_b128 v{vt16}, {vr(Z,4)} offset:{16384*i}")
    a(f"s_movk_i32 s58, {(ZEND-49152)//16}")
    a("v_cmp_gt_u32 vcc, s58, v0")
    a("s_mov_b64 exec, vcc")
    a(f"ds_write_b128 v{vt16}, {vr(Z,4)} offset:49152")
    a("s_mov_b64 exec, -1")
    a(f"s_add_u32 s57, s55, {XL}")
    a(f"v_add_u32 v{vA}, s57, v{vA}")
    a("s_lshl_b32 s58, s54, 14")
    a(f"s_add_u32 s58, s58, {WL}")
    a(f"v_add_u32 v{vB}, s58, v{vB}")
    aA = [vA, 24, 25, 26]; aB = [vB, 27, 28, 29]
    for st in range(1, 4):
        a(f"v_xor_b32 v{aA[st]}, {64*st}, v{vA}")
    for q in range(1, 4):
        a(f"v_xor_b32 v{aB[q]}, {32*q}, v{vB}")
    a(f"v_and_b32 v{t1}, 3, v0")
    a(f"v_lshlrev_b32 v{vbase}, 13, v{vbase}")
    a(f"v_lshl_add_u32 v{vbase}, v{t1}, 4, v{vbase}")
    a("s_mov_b32 s60, 0")
    a("s_waitcnt vmcnt(9)")
    a(f"v_and_b32 v{t0}, 0xffff, v{vrem}")
    a(f"v_lshrrev_b32 v{vrem}, 16, v{vrem}")
    a(f"v_lshl_add_u32 v{vbase}, v{t0}, 4, v{vbase}")
    a(f"v_sub_u32 v{vrem}, v{vrem}, v{t1}")
    R = 32
    RK = 68
    HA = 77
    veff = 30; vone = 31
    a("K2_ROUND:")
    for k in range(KMAX):
        a(f"v_cmpx_lt_i32 vcc, {4*k}, v{vrem}")
        a(f"buffer_load_dwordx4 {vr(R+4*k,4)}, v{vbase}, s[28:31], 0 offen offset:{64*k}")
    a("s_mov_b64 exec, -1")
    a(f"s_waitcnt vmcnt({KMAX}) lgkmcnt(0)")
    a("s_barrier")
    a("s_cmp_lg_u32 s60, 0")
    a("s_cbranch_scc1 K2_NOGEMM")
    a(f"s_cmp_ge_u32 s{sWV}, 14")
    a("s_cbranch_scc1 K2_GEMMDONE")
    XA = 86
    WB = 102
    ACC = 68
    for st in range(4):
        a(f"ds_read_b128 {vr(XA+4*st,4)}, v{aA[st]}")
    def wrd(st, q):
        for u in range(2):
            a(f"ds_read_b64_tr_b16 {vr(WB+4*q+2*u,2)}, v{aB[q]} offset:{st*4096+u*512}")
    for q in range(4):
        wrd(0, q)
    for st in range(4):
        for q in range(4):
            a(f"s_waitcnt lgkmcnt({6 if st < 3 else 6-2*q})")
            d = ACC + 4 * q
            c = "0" if st == 0 else vr(d, 4)
            a(f"v_mfma_f32_16x16x32_bf16 {vr(d,4)}, {vr(XA+4*st,4)}, {vr(WB+4*q,4)}, {c}")
            if st < 3:
                a("s_nop 1")
                wrd(st + 1, q)
    a(f"v_lshrrev_b32 v{t0}, 4, v{vl}")
    a(f"v_and_b32 v{t1}, 15, v{vl}")
    a("s_cmp_eq_u32 s54, 0")
    a("s_cbranch_scc0 K2_GEMMU")
    a(f"v_lshlrev_b32 v{t1}, 4, v{t1}")
    a(f"v_lshl_or_b32 v{t0}, v{t0}, 10, v{t1}")
    a(f"v_add_u32 v{t0}, s55, v{t0}")
    a(f"s_mov_b32 s58, {f32(-LOG2E)}")
    a(f"v_mov_b32 v{t1}, {f32(-float(SHIFT))}")
    a("s_nop 1")
    for r in range(4):
        for q in range(4):
            a(f"v_fma_f32 v{XA+4*r+q}, v{ACC+4*q+r}, s58, v{t1}")
        a(f"ds_write_b128 v{t0}, {vr(XA+4*r,4)} offset:{AP+256*r}")
    a("s_branch K2_GEMMDONE")
    a("K2_GEMMU:")
    a(f"v_lshlrev_b32 v{t1}, 1, v{t1}")
    a(f"v_lshl_or_b32 v{t0}, v{t0}, 9, v{t1}")
    a("s_lshr_b32 s58, s55, 1")
    a(f"s_add_u32 s58, s58, {USTG}")
    a(f"v_add_u32 v{t0}, s58, v{t0}")
    a("s_nop 2")
    for q in range(4):
        for r2 in range(2):
            o = XA + 2 * q + r2
            a(f"v_cvt_pk_bf16_f32 v{o}, v{ACC+4*q+2*r2}, v{ACC+4*q+2*r2+1}")
            a(f"ds_write_b16 v{t0}, v{o} offset:{128*(2*r2)+32*q}")
            a(f"ds_write_b16_d16_hi v{t0}, v{o} offset:{128*(2*r2+1)+32*q}")
    a("K2_GEMMDONE:")
    a(f"s_mov_b32 s58, {f32(-LOG2E)}")
    for m in range(4):
        a(f"v_lshlrev_b32 v{WC+m}, 16, v{WC+m}")
        a(f"v_mul_f32 v{WC+m}, s58, v{WC+m}")
    a(f"v_cvt_pk_bf16_f32 v{WC}, v{WC}, v{WC+1}")
    a(f"v_cvt_pk_bf16_f32 v{WC+1}, v{WC+2}, v{WC+3}")
    a("K2_NOGEMM:")
    a(f"s_mov_b32 s61, {4*KMAX}")
    a(f"v_mov_b32 v{vone}, 1")
    a("K2_RANK:")
    a("s_sub_u32 s58, s61, 3")
    a(f"v_min_i32 v{veff}, s58, v{vrem}")
    a(f"v_cmpx_lt_i32 vcc, s61, v{vrem}")
    a(f"v_mov_b32 v{t0}, {FLAG}")
    a(f"ds_write_b32 v{t0}, v{vone}")
    a("s_mov_b64 exec, -1")
    for k in range(KMAX):
        a(f"v_cmpx_lt_i32 vcc, {4*k}, v{veff}")
        a(f"s_waitcnt vmcnt({KMAX-1-k})")
        a(f"v_lshrrev_b32 v{HA+k}, 6, v{R+4*k+3}")
        a(f"ds_add_rtn_u32 v{RK+k}, v{HA+k}, v{vone} offset:{HIST}")
    a("s_mov_b64 exec, -1")
    a(f"v_lshlrev_b32 v{t0}, 3, v{vl}")
    a(f"v_mov_b32 v{t1}, {FLAG}")
    a("s_waitcnt lgkmcnt(0)")
    a("s_barrier")
    S0 = 86
    a(f"ds_read_b64 {vr(S0,2)}, v{t0} offset:{HIST}")
    a(f"ds_read_b32 v{S0+2}, v{t1}")
    a("s_waitcnt lgkmcnt(1)")
    a(f"v_add_u32 v{S0+4}, 1, v{S0}")
    a(f"v_add_u32 v{S0+5}, 1, v{S0+1}")
    a(f"v_lshrrev_b32 v{S0+4}, 1, v{S0+4}")
    a(f"v_lshrrev_b32 v{S0+5}, 1, v{S0+5}")
    a(f"v_add_u32 v{S0+6}, v{S0+4}, v{S0+5}")
    a(f"v_mov_b32 v{S0+7}, v{S0+6}")
    wave_scan(a, S0 + 7)
    a(f"v_sub_u32 v{S0+8}, v{S0+7}, v{S0+6}")
    a(f"v_add_u32 v{S0+9}, v{S0+8}, v{S0+4}")
    a(f"v_readlane_b32 s62, v{S0+7}, 63")
    a("s_waitcnt lgkmcnt(0)")
    a(f"v_readfirstlane_b32 s63, v{S0+2}")
    a(f"s_cmp_le_u32 s62, {CAPT}")
    a("s_cbranch_scc1 K2_FITS")
    a("s_cmp_eq_u32 s61, 16")
    a("s_cbranch_scc1 K2_END")
    a("s_barrier")
    a("s_movk_i32 s58, 33")
    a("v_cmp_gt_u32 vcc, s58, v0")
    a("s_mov_b64 exec, vcc")
    for i in range(4):
        a(f"v_mov_b32 v{Z+i}, 0")
    a(f"ds_write_b128 v{vt16}, {vr(Z,4)} offset:{HIST}")
    a("s_mov_b64 exec, -1")
    a("s_mov_b32 s61, 16")
    a("s_waitcnt lgkmcnt(0)")
    a("s_barrier")
    a("s_branch K2_RANK")
    a("K2_FITS:")
    a(f"s_mov_b32 s58, {REC}")
    a(f"v_lshl_add_u32 v{S0+8}, v{S0+8}, 5, s58")
    a(f"v_lshl_add_u32 v{S0+9}, v{S0+9}, 5, s58")
    a(f"ds_write_b64 v{t0}, {vr(S0+8,2)} offset:{START}")
    a("s_add_u32 s64, s62, 63")
    a("s_lshr_b32 s64, s64, 6")
    for k in range(KMAX):
        a(f"v_cmpx_lt_i32 vcc, {4*k}, v{veff}")
        a(f"ds_read_b32 v{HA+k}, v{HA+k} offset:{START}")
    a("s_mov_b64 exec, -1")
    D0 = 100
    a(f"s_cmp_lt_u32 s{sWV}, 14")
    a("s_cbranch_scc1 K2_NODUMMY")
    a(f"v_mov_b32 v{D0}, 0")
    a(f"v_mov_b32 v{D0+1}, 0")
    a(f"v_mov_b32 v{D0+2}, {N}")
    a(f"s_cmp_eq_u32 s{sWV}, 14")
    a("s_cbranch_scc1 K2_TAILFILL")
    for h in range(2):
        a(f"v_lshlrev_b32 v{D0+3}, 9, v{vl}")
        if h:
            a(f"v_add_u32 v{D0+3}, 0x100, v{D0+3}")
        a(f"v_lshl_add_u32 v{D0+4}, v{S0+h}, 4, v{S0+8+h}")
        a(f"v_and_b32 v{D0+5}, 1, v{S0+h}")
        a(f"v_cmpx_eq_u32 vcc, 1, v{D0+5}")
        a(f"ds_write_b128 v{D0+4}, {vr(D0,4)}")
        a("s_mov_b64 exec, -1")
        a("s_nop 0")
    a("s_branch K2_NODUMMY")
    a("K2_TAILFILL:")
    a(f"v_mov_b32 v{D0+3}, {NPB*256}")
    a("s_lshl_b32 s58, s64, 6")
    a("s_add_u32 s58, s58, 4")
    a("s_sub_u32 s58, s58, s62")
    a("s_lshl_b32 s58, s58, 1")
    a("s_lshl_b32 s59, s62, 5")
    a(f"s_add_u32 s59, s59, {REC}")
    a(f"v_lshl_add_u32 v{D0+4}, v{vl}, 4, s59")
    a(f"v_sub_u32 v{D0+5}, s58, v{vl}")
    for i in range(3):
        a(f"v_cmpx_lt_i32 vcc, 0, v{D0+5}")
        a(f"ds_write_b128 v{D0+4}, {vr(D0,4)} offset:{1024*i}")
        a(f"v_subrev_u32 v{D0+5}, 64, v{D0+5}")
    a("s_mov_b64 exec, -1")
    a("K2_NODUMMY:")
    a("s_waitcnt lgkmcnt(0)")
    for k in range(KMAX):
        a(f"v_cmpx_lt_i32 vcc, {4*k}, v{veff}")
        a(f"v_lshl_add_u32 v{HA+k}, v{RK+k}, 4, v{HA+k}")
        a(f"ds_write_b128 v{HA+k}, {vr(R+4*k,4)}")
    a("s_mov_b64 exec, -1")
    G = [24, 36]
    T = [48, 56]
    H = [64, 72]
    AOP = 80
    APR = 88
    IDX = 92
    NO = 96
    AAD = 97
    P_, D_, N_ = 102, 106, 110
    ACCD, ACCN = 114, 118
    ID = 122
    vrs, vra, vinc, v12c, vF, vZ = 124, 125, 126, 127, 9, 10
    a(f"v_and_b32 v{t0}, 15, v{vl}")
    a(f"v_lshlrev_b32 v{IDX+1}, 4, v{t0}")
    a(f"v_mov_b32 v{IDX+3}, v{IDX+1}")
    a(f"v_mul_u32_u24 v{v12c}, 12, v{t0}")
    a(f"v_and_b32 v{t0}, 1, v{vl}")
    a(f"v_lshlrev_b32 v{t0}, 4, v{t0}")
    a("s_movk_i32 s58, 0x3f80")
    a(f"v_lshlrev_b32 v{t0}, v{t0}, s58")
    a(f"v_and_b32 v{t1}, 2, v{vl}")
    a(f"v_cmp_eq_u32 vcc, 0, v{t1}")
    a(f"v_lshrrev_b32 v{vW}, 4, v{vl}")
    a(f"v_bfe_u32 v{vX}, v{vl}, 2, 2")
    a(f"v_cndmask_b32 v{ID}, 0, v{t0}, vcc")
    a(f"v_cndmask_b32 v{ID+1}, v{t0}, 0, vcc")
    a(f"v_cmp_eq_u32 vcc, v{vW}, v{vX}")
    a(f"s_lshl_b32 s58, s64, 5")
    a(f"s_lshl_b32 s59, s{sWV}, 2")
    a(f"v_cndmask_b32 v{AOP+2}, 0, v{ID}, vcc")
    a(f"v_cndmask_b32 v{AOP+3}, 0, v{ID+1}, vcc")
    a(f"v_mov_b32 v{AOP+6}, v{AOP+2}")
    a(f"v_mov_b32 v{AOP+7}, v{AOP+3}")
    a("s_mul_i32 s59, s59, s58")
    a(f"s_add_u32 s59, s59, {REC}")
    a(f"v_mov_b32 v{t1}, s59")
    a(f"v_mad_u32_u24 v{vrs}, v{vW}, s58, v{t1}")
    a(f"v_mad_u32_u24 v{vra}, v{vX}, s58, v{t1}")
    a(f"v_and_b32 v{t0}, 3, v{vl}")
    a(f"v_cmp_eq_u32 vcc, v{vW}, v{t0}")
    a(f"v_mov_b32 v{vZ}, {ZERO}")
    a(f"v_mov_b32 v{t0}, 0x80")
    a(f"v_cndmask_b32 v{vra}, v{vZ}, v{vra}, vcc")
    a(f"v_cndmask_b32 v{vinc}, 0, v{t0}, vcc")
    for i in range(8):
        a(f"v_mov_b32 v{ACCD+i}, 0")
    a(f"s_mov_b32 s66, {f32(2.0**-SHIFT)}")
    a("s_mov_b32 s67, s66")
    a("s_waitcnt lgkmcnt(0)")
    for g in G:
        for o in (0, 6):
            a(f"v_mov_b32 v{g+o}, v{WC}")
            a(f"v_mov_b32 v{g+o+1}, v{WC+1}")
    a("s_barrier")
    a("s_cmp_eq_u32 s64, 0")
    a("s_cbranch_scc1 K2_MAINDONE")

    def gload(st):
        g = G[st & 1]
        a(f"buffer_load_dwordx4 {vr(g+2,4)}, {vr(IDX,2)}, s[24:27], 0 idxen offen")
        a(f"buffer_load_dwordx4 {vr(g+8,4)}, {vr(IDX+2,2)}, s[24:27], 0 idxen offen")
    def rd_idx(p):
        a(f"ds_read_b32 v{IDX}, v{vrs} offset:{32*p+8}")
        a(f"ds_read_b32 v{IDX+2}, v{vrs} offset:{32*p+24}")
    def rd_no(p, dst=NO):
        a(f"ds_read_b32 v{dst}, v{vrs} offset:{32*p+12}")
    def rd_a(p, aad):
        a(f"ds_read_b128 {vr(APR,4)}, v{aad} offset:{AP}")
        a(f"ds_read_b64 {vr(AOP,2)}, v{vra} offset:{32*p}")
        a(f"ds_read_b64 {vr(AOP+4,2)}, v{vra} offset:{32*p+16}")
    def mf(st):
        g, t, h = G[st & 1], T[st & 1], H[st & 1]
        return [f"v_mfma_f32_16x16x32_bf16 {vr(t,4)}, {vr(AOP,4)}, {vr(g,4)}, {vr(APR,4)}",
                f"v_mfma_f32_16x16x32_bf16 {vr(t+4,4)}, {vr(AOP+4,4)}, {vr(g+6,4)}, {vr(APR,4)}",
                f"v_mfma_f32_4x4x4_16b_bf16 {vr(h,4)}, {vr(ID,2)}, {vr(g+4,2)}, 0",
                f"v_mfma_f32_4x4x4_16b_bf16 {vr(h+4,4)}, {vr(ID,2)}, {vr(g+10,2)}, 0"]
    MK = [68, 70]
    rd_idx(0)
    rd_no(0, AAD)
    rd_no(1, AAD + 1)
    a("s_waitcnt lgkmcnt(2)")
    gload(0)
    rd_idx(1)
    a("s_waitcnt lgkmcnt(2)")
    a(f"v_add_u32 v{AAD}, v{AAD}, v{IDX+1}")
    a(f"v_add_u32 v{AAD+1}, v{AAD+1}, v{IDX+1}")
    a("s_waitcnt lgkmcnt(0)")
    gload(1)
    rd_a(0, AAD)
    rd_idx(2)
    a(f"v_cmp_ne_u32 s[{MK[0]}:{MK[0]+1}], v{AAD}, v{AAD+1}")
    a("s_waitcnt vmcnt(2) lgkmcnt(0)")
    for m in mf(0):
        a(m)
    gload(2)
    a("s_nop 1")
    rd_a(1, AAD + 1)
    rd_idx(3)
    rd_no(2)
    a("s_mov_b32 s65, s64")
    a(".p2align 5")
    a("K2_LOOP:")
    def pk(op, d, x, y, z=None):
        for i in (0, 2):
            if z is None:
                a(f"v_pk_{op}_f32 {vr(d+i,2)}, {vr(x+i,2)}, {vr(y+i,2)}")
            else:
                a(f"v_pk_{op}_f32 {vr(d+i,2)}, {vr(x+i,2)}, {vr(y+i,2)}, {vr(z+i,2)}")
    def flush(j):
        a(f"v_sub_u32 v{vF}, v{AAD+j}, v{v12c}")
        for q in range(4):
            a(f"ds_add_f32 v{vF}, v{ACCD+q} offset:{DEN+64*q}")
        for q in range(4):
            a(f"ds_add_f32 v{vF}, v{ACCN+q} offset:{NUM+64*q}")
    for j in range(4):
        t, h = T[j & 1], H[j & 1]
        e = [f"v_exp_f32_e64 v{t+i}, v{t+i} clamp" for i in range(8)]
        m = mf(j + 1)
        a("s_waitcnt vmcnt(2) lgkmcnt(3)")
        for x in (e[0], m[0], e[1], m[1], e[2], m[2], e[3], m[3], e[4]):
            a(x)
        a("s_cmp_gt_u32 s65, 3")
        a("s_waitcnt lgkmcnt(0)")
        a(f"s_cbranch_scc0 K2_SKIP{j}")
        gload(j + 1)
        a(f"K2_BACK{j}:")
        a(e[5])
        a(f"v_add_u32 v{AAD+(j+2)%4}, v{NO}, v{IDX+1}")
        a(e[6])
        rd_a(j + 2, AAD + (j + 2) % 4)
        rd_idx(j + 4)
        rd_no(j + 3)
        a(e[7])
        mk = MK[(j + 1) & 1]
        a(f"v_cmp_ne_u32 s[{mk}:{mk+1}], v{AAD+(j+1)%4}, v{AAD+(j+2)%4}")
        for i in range(4):
            a(f"v_pk_add_f32 {vr(t+2*i,2)}, {vr(t+2*i,2)}, s[66:67]")
        pk("mul", P_, t, t + 4)
        pk("add", D_, t, t + 4)
        pk("mul", N_, h, t + 4)
        for i in range(4):
            a(f"v_rcp_f32 v{P_+i}, v{P_+i}")
        pk("fma", N_, h + 4, t, N_)
        if j == 3:
            a(f"v_add_u32 v{vrs}, 0x80, v{vrs}")
            a(f"v_add_u32 v{vra}, v{vinc}, v{vra}")
        pk("fma", ACCD, D_, P_, ACCD)
        pk("fma", ACCN, N_, P_, ACCN)
        a("s_sub_u32 s65, s65, 1")
        a("s_cmp_eq_u32 s65, 0")
        a(f"s_cbranch_scc1 K2_EXIT{j}")
        mk = MK[j & 1]
        a(f"s_cmp_lg_u64 s[{mk}:{mk+1}], 0")
        a(f"s_cbranch_scc1 K2_FLUSH{j}")
        if j == 3:
            a("s_branch K2_LOOP")
        else:
            a(f"K2_FBACK{j}:")
    for j in range(4):
        a(f"K2_SKIP{j}:")
        a("s_waitcnt vmcnt(0)")
        a(f"s_branch K2_BACK{j}")
        a(f"K2_FLUSH{j}:")
        mk = MK[j & 1]
        a(f"s_mov_b64 exec, s[{mk}:{mk+1}]")
        flush(j)
        a(f"ds_read_b128 {vr(ACCD,4)}, v{vZ}")
        a(f"ds_read_b128 {vr(ACCN,4)}, v{vZ}")
        a("s_mov_b64 exec, -1")
        a("s_branch K2_LOOP" if j == 3 else f"s_branch K2_FBACK{j}")
        a(f"K2_EXIT{j}:")
        flush(j)
        if j < 3:
            a("s_branch K2_MAINDONE")
    a("K2_MAINDONE:")
    a("s_cmp_eq_u32 s63, 0")
    a("s_cbranch_scc1 K2_FINAL")
    a("s_waitcnt vmcnt(0) lgkmcnt(0)")
    a("s_movk_i32 s58, 33")
    a("v_cmp_gt_u32 vcc, s58, v0")
    a("s_mov_b64 exec, vcc")
    for i in range(4):
        a(f"v_mov_b32 v{Z+i}, 0")
    a(f"ds_write_b128 v{vt16}, {vr(Z,4)} offset:{HIST}")
    a("s_mov_b64 exec, -1")
    a(f"v_subrev_u32 v{vrem}, s61, v{vrem}")
    a("s_lshl_b32 s58, s61, 4")
    a(f"v_add_u32 v{vbase}, s58, v{vbase}")
    a("s_add_u32 s60, s60, 1")
    a("s_cmp_le_u32 s60, 128")
    a("s_cbranch_scc1 K2_ROUND")
    a("s_endpgm")
    a("K2_FINAL:")
    a(f"s_movk_i32 s58, {NPB*8}")
    a("v_cmp_gt_u32 vcc, s58, v0")
    a(f"v_lshrrev_b32 v{t0}, 3, v0")
    a(f"v_and_b32 v{t1}, 7, v0")
    a(f"v_lshlrev_b32 v11, 5, v{t1}")
    a(f"v_lshl_or_b32 v11, v{t0}, 8, v11")
    a(f"v_lshrrev_b32 v12, 1, v11")
    a(f"v_add_u32 v12, {USTG}, v12")
    a(f"s_mov_b32 s58, {f32(1e-6 * 2.0**SHIFT)}")
    a("s_waitcnt vmcnt(0) lgkmcnt(0)")
    a("s_barrier")
    a("s_mov_b64 exec, vcc")
    a("s_cbranch_execz K2_END")
    FD, FN, FU = 24, 32, 40
    a(f"ds_read_b128 {vr(FD,4)}, v11 offset:{DEN}")
    a(f"ds_read_b128 {vr(FD+4,4)}, v11 offset:{DEN+16}")
    a(f"ds_read_b128 {vr(FN,4)}, v11 offset:{NUM}")
    a(f"ds_read_b128 {vr(FN+4,4)}, v11 offset:{NUM+16}")
    a(f"ds_read_b128 {vr(FU,4)}, v12")
    XU = 48
    for i in range(4):
        a(f"v_lshlrev_b32 v{XU+2*i}, 16, v{XF+i}")
        a(f"v_and_b32 v{XU+2*i+1}, 0xffff0000, v{XF+i}")
    a("s_waitcnt lgkmcnt(3)")
    for i in range(8):
        a(f"v_add_f32 v{FD+i}, s58, v{FD+i}")
    for i in range(8):
        a(f"v_rcp_f32 v{FD+i}, v{FD+i}")
    a("s_waitcnt lgkmcnt(0)")
    for i in range(4):
        a(f"v_lshlrev_b32 v{XU+8+2*i}, 16, v{FU+i}")
        a(f"v_and_b32 v{XU+8+2*i+1}, 0xffff0000, v{FU+i}")
    for i in range(8):
        a(f"v_fmac_f32 v{XU+8+i}, v{FN+i}, v{FD+i}")
    for i in range(8):
        a(f"v_max_f32 v{XU+8+i}, 0, v{XU+8+i}")
    for i in range(8):
        a(f"v_add_f32 v{XU+i}, v{XU+i}, v{XU+8+i}")
    for i in range(4):
        a(f"v_cvt_pk_bf16_f32 v{FD+i}, v{XU+2*i}, v{XU+2*i+1}")
    a(f"buffer_store_dwordx4 {vr(FD,4)}, v{vOUT}, s[20:23], s52 offen")
    a("K2_END:")
    a("s_endpgm")

HEADER = """; GatedGCN message passing, two launches.
"""

def descriptor(name, vgpr, sgpr):
    return f""".p2align 6
.amdhsa_kernel {name}
  .amdhsa_next_free_vgpr {vgpr}
  .amdhsa_next_free_sgpr {sgpr}
  .amdhsa_accum_offset {(vgpr+3)//4*4}
  .amdhsa_group_segment_fixed_size 0
  .amdhsa_kernarg_size 96
  .amdhsa_user_sgpr_count 2
  .amdhsa_user_sgpr_kernarg_segment_ptr 1
  .amdhsa_system_sgpr_workgroup_id_x 1
  .amdhsa_float_denorm_mode_32 3
.end_amdhsa_kernel
"""

def main():
    out = HEADER
    out += f"; @launch kernel=k1_kernel grid=({NGEMM+NCH},1,1) block=(512,1,1) lds=65536\n"
    out += f"; @launch kernel=k2_kernel grid=(256,1,1) block=(1024,1,1) lds={K2_LDS}\n"
    out += '.amdgcn_target "amdgcn-amd-amdhsa--gfx950"\n.text\n'
    for name, g in (("k1_kernel", gen_k1), ("k2_kernel", gen_k2)):
        a = A()
        g(a)
        out += f".globl {name}\n.p2align 8\n.type {name},@function\n" + a.text()
    out += '.section .rodata,"a"\n'
    out += descriptor("k1_kernel", 100, 64)
    out += descriptor("k2_kernel", 128, 80)
    path = sys.argv[1] if len(sys.argv) > 1 else "standalone__edge_featured_mpnn_gatedgcn__graph.s"
    open(path, "w").write(out)

main()
```

```python
import sys, struct

N = 12500
E = 400000
NPB = 98
NBK = 128
NCH = 250
CHE = 1600
NGEMM = 196
TS = 0x310000
WS_REC = 0x800000
REC_STRIDE = 32768
WS_OFF = 0x1000000
WS_SPILL = 0x4000000
LOG2E = 1.4426950408889634
SHIFT = 40

def f32(x):
    return "0x%08x" % struct.unpack("<I", struct.pack("<f", x))[0]

import os
STAMP = os.environ.get("STAMP") == "1"
OPT = dict(kv.split("=") for kv in os.environ.get("OPT", "").split(",") if kv)
WS_STAMP = 0x2000000
def stamp(a, i):
    if STAMP:
        a(f"s_memtime s[{80+2*i}:{81+2*i}]")
def stamp_out(a, n, wsptr, wave_sreg, base):
    if not STAMP:
        return
    a("s_memrealtime s[78:79]")
    a("s_waitcnt vmcnt(0) lgkmcnt(0)")
    a("s_mov_b64 exec, 1")
    srd(a, 72, wsptr, 1 << 20, add=hex(WS_STAMP + base))
    a(f"s_lshl_b32 s76, s2, 4")
    a(f"s_add_u32 s76, s76, s{wave_sreg}")
    a(f"s_lshl_b32 s76, s76, 6")
    a("v_mov_b32 v1, s76")
    for i in range(n):
        a(f"v_mov_b32 v2, s{80+2*i}")
        a(f"buffer_store_dword v2, v1, s[72:75], 0 offen offset:{4*i}")
        a("s_nop 1")
    a("v_mov_b32 v2, s78")
    a(f"buffer_store_dword v2, v1, s[72:75], 0 offen offset:60")
    a("s_waitcnt vmcnt(0)")

class A:
    def __init__(self):
        self.l = []
    def __call__(self, s=""):
        for line in s.split("\n"):
            line = line.strip()
            if not line:
                continue
            if line.endswith(":"):
                self.l.append(line)
            else:
                self.l.append("    " + line)
    def text(self):
        return "\n".join(self.l) + "\n"

def vr(b, n):
    return f"v[{b}:{b+n-1}]" if n > 1 else f"v{b}"
def sr(b, n):
    return f"s[{b}:{b+n-1}]" if n > 1 else f"s{b}"

def srd(a, d, ptr, size, add=None, stride=0):
    if add is None:
        a(f"s_mov_b32 s{d}, s{ptr}")
        a(f"s_and_b32 s{d+1}, s{ptr+1}, 0xffff")
    else:
        a(f"s_add_u32 s{d}, s{ptr}, {add}")
        a(f"s_addc_u32 s{d+1}, s{ptr+1}, 0")
        a(f"s_and_b32 s{d+1}, s{d+1}, 0xffff")
    if stride:
        a(f"s_or_b32 s{d+1}, s{d+1}, {hex(stride << 16)}")
    a(f"s_mov_b32 s{d+2}, {size}")
    a(f"s_mov_b32 s{d+3}, 0x00020000")

def wave_scan(a, v):
    for sh in (1, 2, 4, 8):
        a("s_nop 1")
        a(f"v_add_u32_dpp v{v}, v{v}, v{v} row_shr:{sh} row_mask:0xf bank_mask:0xf bound_ctrl:0")
    a("s_nop 1")
    a(f"v_add_u32_dpp v{v}, v{v}, v{v} row_bcast:15 row_mask:0xa bank_mask:0xf")
    a("s_nop 1")
    a(f"v_add_u32_dpp v{v}, v{v}, v{v} row_bcast:31 row_mask:0xc bank_mask:0xf")

def gemm_lane_addrs(a, vl, vW, vX, vA, vB, t0, t1):
    a(f"v_lshrrev_b32 v{t0}, 3, v{vl}")
    a(f"v_and_b32 v{t1}, 2, v{t0}")
    a(f"v_and_b32 v{vW}, 7, v{vl}")
    a(f"v_xor_b32 v{vW}, v{vW}, v{t1}")
    a(f"v_lshlrev_b32 v{vW}, 4, v{vW}")
    a(f"v_lshl_or_b32 v{vW}, v{t0}, 8, v{vW}")
    a(f"v_lshrrev_b32 v{t0}, 4, v{vl}")
    a(f"v_and_b32 v{t1}, 15, v{vl}")
    a(f"v_xor_b32 v{vX}, v{t1}, v{t0}")
    a(f"v_lshlrev_b32 v{vX}, 4, v{vX}")
    a(f"v_lshl_or_b32 v{vA}, v{t1}, 8, v{vX}")
    a(f"v_lshl_or_b32 v{vX}, v{t0}, 8, v{vX}")
    a(f"v_bfe_u32 v{t1}, v{vl}, 2, 2")
    a(f"v_lshl_add_u32 v{vB}, v{t0}, 3, v{t1}")
    a(f"v_lshlrev_b32 v{vB}, 7, v{vB}")
    a(f"v_and_b32 v{t1}, 2, v{t1}")
    a(f"v_and_b32 v{t0}, 1, v{t0}")
    a(f"v_lshl_or_b32 v{t1}, v{t0}, 2, v{t1}")
    a(f"v_bfe_u32 v{t0}, v{vl}, 1, 1")
    a(f"v_xor_b32 v{t0}, v{t0}, v{t1}")
    a(f"v_lshl_or_b32 v{vB}, v{t0}, 4, v{vB}")
    a(f"v_and_b32 v{t0}, 1, v{vl}")
    a(f"v_lshl_or_b32 v{vB}, v{t0}, 3, v{vB}")

def gen_k1(a):
    a("k1_kernel:")
    a(f"s_cmp_ge_u32 s2, {NGEMM + NCH}")
    a("s_cbranch_scc1 K1_END")
    a(f"s_cmp_ge_u32 s2, {NGEMM}")
    a("s_cbranch_scc1 K1_PART")
    a("s_load_dwordx2 s[4:5], s[0:1], 0")
    a("s_load_dwordx2 s[6:7], s[0:1], 40")
    a("s_load_dwordx2 s[28:29], s[0:1], 64")
    a("s_load_dwordx2 s[30:31], s[0:1], 88")
    vl, vW, vX, vA, vB, t0, t1 = 1, 2, 3, 4, 5, 6, 7
    a(f"v_and_b32 v{vl}, 63, v0")
    a(f"v_lshrrev_b32 v{t0}, 6, v0")
    a("s_and_b32 s33, s2, 1")
    a(f"v_readfirstlane_b32 s32, v{t0}")
    a("s_lshr_b32 s34, s2, 1")
    gemm_lane_addrs(a, vl, vW, vX, vA, vB, t0, t1)
    a(f"v_xor_b32 v8, 64, v{vW}")
    a(f"v_xor_b32 v9, 64, v{vX}")
    a(f"v_xor_b32 v10, 0x80, v{vX}")
    a(f"v_xor_b32 v11, 0xc0, v{vX}")
    a("s_lshl_b32 s35, s32, 12")
    a("s_lshl_b32 s36, s33, 7")
    a("s_add_u32 s36, s36, s35")
    a("s_add_u32 s37, s36, 2048")
    a("s_lshl_b32 s38, s34, 15")
    a("s_add_u32 s38, s38, s35")
    a("s_lshl_b32 s39, s32, 11")
    a("s_waitcnt lgkmcnt(0)")
    srd(a, 8, 4, N * 256)
    srd(a, 12, 6, 32768)
    srd(a, 16, 28, 32768)
    a("s_mul_i32 s40, s33, %d" % TS)
    srd(a, 20, 30, N * 256, add="s40")
    a("s_mov_b32 m0, s39")
    a("s_add_u32 s41, s39, 1024")
    a(f"buffer_load_dwordx4 v{vW}, s[12:15], s36 offen lds")
    a("s_mov_b32 m0, s41")
    a("s_add_u32 s41, s39, 16384")
    a("buffer_load_dwordx4 v8, s[12:15], s37 offen lds")
    a("s_mov_b32 m0, s41")
    a("s_add_u32 s41, s39, 17408")
    a(f"buffer_load_dwordx4 v{vW}, s[16:19], s36 offen lds")
    a("s_mov_b32 m0, s41")
    a("s_add_u32 s41, s35, 32768")
    a("buffer_load_dwordx4 v8, s[16:19], s37 offen lds")
    xr = [vX, 9, 10, 11]
    for i in range(4):
        a("s_mov_b32 m0, s41")
        a("s_add_u32 s41, s41, 1024")
        a(f"buffer_load_dwordx4 v{xr[i]}, s[8:11], s38 offen lds")
        if i < 3:
            a("s_add_u32 s38, s38, 1024")
    a("s_sub_u32 s38, s38, 3072")
    a("s_add_u32 s41, s35, 32768")
    a(f"v_add_u32 v{vA}, s41, v{vA}")
    for st in range(1, 4):
        a(f"v_xor_b32 v{11+st}, {64*st}, v{vA}")
    for q in range(1, 4):
        a(f"v_xor_b32 v{14+q}, {32*q}, v{vB}")
    aA = [vA, 12, 13, 14]
    aB = [vB, 15, 16, 17]
    a(f"v_lshrrev_b32 v{t0}, 4, v{vl}")
    a(f"v_and_b32 v{t1}, 15, v{vl}")
    a(f"v_lshlrev_b32 v{t1}, 4, v{t1}")
    a(f"v_lshl_or_b32 v18, v{t0}, 10, v{t1}")
    a("s_waitcnt vmcnt(0)")
    a("s_barrier")
    XA = 20
    for st in range(4):
        a(f"ds_read_b128 {vr(XA+4*st,4)}, v{aA[st]}")
    WB = 36
    ACC = 68
    seq = [(st, m) for st in range(4) for m in range(2)]
    def wreads_half(n):
        st, m = seq[n]
        base = WB + 16 * (n & 1)
        for q in range(4):
            for u in range(2):
                a(f"ds_read_b64_tr_b16 {vr(base+4*q+2*u,2)}, v{aB[q]} offset:{m*16384+st*4096+u*512}")
    wreads_half(0)
    for n, (st, m) in enumerate(seq):
        if n + 1 < len(seq):
            a("s_waitcnt lgkmcnt(4)")
            wreads_half(n + 1)
            a("s_waitcnt lgkmcnt(8)")
        else:
            a("s_waitcnt lgkmcnt(0)")
        base = WB + 16 * (n & 1)
        for q in range(4):
            d = ACC + 16 * m + 4 * q
            c = "0" if st == 0 else vr(d, 4)
            a(f"v_mfma_f32_16x16x32_bf16 {vr(d,4)}, {vr(XA+4*st,4)}, {vr(base+4*q,4)}, {c}")
    a(f"s_mov_b32 s42, {f32(-LOG2E)}")
    a("s_mov_b32 s43, s42")
    a("s_nop 1")
    for i in range(8):
        a(f"v_pk_mul_f32 {vr(ACC+2*i,2)}, {vr(ACC+2*i,2)}, s[42:43]")
    for r in range(4):
        o = 20 + 4 * r
        a(f"v_cvt_pk_bf16_f32 v{o}, v{ACC+r}, v{ACC+4+r}")
        a(f"v_cvt_pk_bf16_f32 v{o+1}, v{ACC+8+r}, v{ACC+12+r}")
        a(f"v_cvt_pk_bf16_f32 v{o+2}, v{ACC+16+r}, v{ACC+20+r}")
        a(f"v_cvt_pk_bf16_f32 v{o+3}, v{ACC+24+r}, v{ACC+28+r}")
        a(f"buffer_store_dwordx4 {vr(o,4)}, v18, s[20:23], s38 offen offset:{256*r}")
    a("s_or_b32 s41, s34, s32")
    a("s_cmp_lg_u32 s41, 0")
    a("s_cbranch_scc1 K1_END")
    a(f"s_mov_b32 s22, {(N+1)*256}")
    a(f"s_mov_b32 s41, {N*256}")
    a("v_mov_b32 v36, 0x70007000")
    a("v_mov_b32 v37, 0x70007000")
    a("v_mov_b32 v38, 0")
    a("v_mov_b32 v39, 0")
    a("s_mov_b64 exec, 0xffff")
    a(f"buffer_store_dwordx4 v[36:39], v18, s[20:23], s41 offen")
    a("s_endpgm")
    a("K1_PART:")
    HIST, START, RECL = 0, 512, 1024
    a("s_load_dwordx2 s[4:5], s[0:1], 8")
    a("s_load_dwordx4 s[28:31], s[0:1], 16")
    a("s_load_dwordx2 s[6:7], s[0:1], 88")
    a(f"s_sub_u32 s32, s2, {NGEMM}")
    a(f"s_mul_i32 s33, s32, {CHE*4}")
    a("s_lshl_b32 s34, s33, 1")
    a("v_lshlrev_b32 v1, 4, v0")
    a("v_lshlrev_b32 v2, 5, v0")
    a("v_lshlrev_b32 v3, 2, v0")
    a("v_mov_b32 v40, 0")
    a("v_mov_b32 v41, 1")
    a(f"v_cmp_gt_u32 s[36:37], 64, v0")
    a(f"s_movk_i32 s35, {CHE//4}")
    a(f"v_cmp_gt_u32 s[38:39], s35, v0")
    a("s_movk_i32 s35, 128")
    a(f"v_cmp_gt_u32 vcc, s35, v0")
    a("s_mov_b64 exec, vcc")
    a(f"ds_write_b32 v3, v40 offset:{HIST}")
    a("s_mov_b64 exec, s[38:39]")
    a("s_waitcnt lgkmcnt(0)")
    srd(a, 8, 30, E * 4)
    srd(a, 12, 28, E * 4)
    srd(a, 16, 4, E * 8)
    a("buffer_load_dwordx4 v[4:7], v1, s[8:11], s33 offen")
    a("buffer_load_dwordx4 v[8:11], v1, s[12:15], s33 offen")
    a("buffer_load_dwordx4 v[12:15], v2, s[16:19], s34 offen")
    a("buffer_load_dwordx4 v[16:19], v2, s[16:19], s34 offen offset:16")
    a("s_lshl_b32 s35, s32, 15")
    a(f"s_add_u32 s35, s35, {WS_REC}")
    srd(a, 20, 6, 0, add="s35")
    srd(a, 24, 6, NBK * 1024, add=hex(WS_OFF))
    a("s_movk_i32 s35, -98")
    a("s_barrier")
    a("s_waitcnt vmcnt(3)")
    for j in range(4):
        a(f"v_mul_u32_u24 v{20+j}, 10700, v{4+j}")
        a(f"v_lshrrev_b32 v{20+j}, 20, v{20+j}")
        a(f"v_lshlrev_b32 v{24+j}, 2, v{20+j}")
        a(f"ds_add_rtn_u32 v{28+j}, v{24+j}, v41 offset:{HIST}")
    for j in range(4):
        a(f"v_mad_i32_i24 v{20+j}, v{20+j}, s35, v{4+j}")
        a(f"v_lshlrev_b32 v{33+2*j}, 8, v{20+j}")
    a("s_waitcnt vmcnt(2)")
    for j in range(4):
        a(f"v_mov_b32 v{32+2*j}, v{8+j}")
    a("s_mov_b64 exec, -1")
    a("v_and_b32 v42, 63, v0")
    a("v_lshlrev_b32 v42, 3, v42")
    a("s_waitcnt lgkmcnt(0)")
    a("s_barrier")
    a(f"ds_read_b64 v[44:45], v42 offset:{HIST}")
    a("s_waitcnt lgkmcnt(0)")
    a("v_add_u32 v46, 3, v44")
    a("v_add_u32 v47, 3, v45")
    a("v_and_b32 v46, -4, v46")
    a("v_and_b32 v47, -4, v47")
    a("v_add_u32 v48, v46, v47")
    a("v_mov_b32 v49, v48")
    wave_scan(a, 49)
    a("v_sub_u32 v50, v49, v48")
    a("v_add_u32 v51, v50, v46")
    a("v_readlane_b32 s40, v49, 63")
    a(f"ds_write_b64 v42, v[50:51] offset:{START}")
    a("s_mov_b64 exec, s[38:39]")
    for j in range(4):
        a(f"ds_read_b32 v{20+j}, v{24+j} offset:{START}")
    a("s_lshl_b32 s22, s40, 4")
    a("s_mov_b64 exec, s[36:37]")
    a("v_lshl_or_b32 v52, v44, 16, v50")
    a("v_lshl_or_b32 v53, v45, 16, v51")
    a("v_lshlrev_b32 v54, 8, v42")
    a("s_lshl_b32 s41, s32, 2")
    a("buffer_store_dword v52, v54, s[24:27], s41 offen")
    a("buffer_store_dword v53, v54, s[24:27], s41 offen offset:1024")
    a("s_mov_b64 exec, s[38:39]")
    for j in range(4):
        a(f"s_waitcnt lgkmcnt({3-j})" if j else "s_waitcnt vmcnt(2) lgkmcnt(3)")
        a(f"v_add_lshl_u32 v{20+j}, v{20+j}, v{28+j}, 4")
    for j in range(4):
        a(f"ds_write2_b64 v{20+j}, {vr(12+2*j,2)}, {vr(32+2*j,2)} offset0:{RECL//8} offset1:{RECL//8+1}")
    a("s_mov_b64 exec, -1")
    a("s_waitcnt lgkmcnt(0)")
    a("s_barrier")
    for i in range(4):
        a(f"ds_read_b128 {vr(4+4*i,4)}, v1 offset:{RECL+8192*i}" if i < 3 else
          f"ds_read_b128 {vr(4+4*i,4)}, v1 offset:{RECL+8192*i}")
    a("s_movk_i32 s41, 0x2000")
    a("s_movk_i32 s42, 0x4000")
    a("s_movk_i32 s43, 0x6000")
    so = ["0", "s41", "s42", "s43"]
    for i in range(4):
        a(f"s_waitcnt lgkmcnt({3-i})")
        a(f"buffer_store_dwordx4 {vr(4+4*i,4)}, v1, s[20:23], {so[i]} offen")
    a("K1_END:")
    a("s_endpgm")

DEN, NUM, ZERO, HIST, FLAG, START, AP, USTG, REC = 0, 25344, 50688, 50944, 51456, 51712, 52224, 80896, 95232
K2_LDS = 163072
ZEND = 51472
CAPT = 2112
KMAX = 9

def gen_k2(a):
    a("k2_kernel:")
    a("s_cmp_ge_u32 s2, 256")
    a("s_cbranch_scc1 K2_END")
    stamp(a, 0)
    a("s_load_dwordx2 s[4:5], s[0:1], 0")
    a("s_load_dwordx2 s[6:7], s[0:1], 32")
    a("s_load_dwordx4 s[40:43], s[0:1], 48")
    a("s_load_dwordx2 s[44:45], s[0:1], 72")
    a("s_load_dwordx2 s[46:47], s[0:1], 88")
    sWV, sSL, sBK = 36, 37, 38
    vl = 1; vbase = 2; vrem = 3; XF = 4
    vt16 = 8
    t0, t1 = 9, 10
    a(f"v_and_b32 v{vl}, 63, v0")
    a(f"v_lshrrev_b32 v{t0}, 6, v0")
    a(f"s_bfe_u32 s{sSL}, s2, 0x10002")
    a(f"v_readfirstlane_b32 s{sWV}, v{t0}")
    a("s_lshr_b32 s3, s2, 3")
    a(f"s_and_b32 s{sBK}, s2, 3")
    a(f"s_lshl_b32 s{sBK}, s{sBK}, 5")
    a(f"s_or_b32 s{sBK}, s{sBK}, s3")
    a(f"v_and_b32 v{vbase}, -4, v0")
    a(f"v_lshlrev_b32 v{vt16}, 4, v0")
    vW, vX, vA, vB = 11, 12, 13, 14
    gemm_lane_addrs(a, vl, vW, vX, vA, vB, t0, t1)
    a(f"s_lshl_b32 s48, s{sBK}, 10")
    a(f"s_add_u32 s48, s48, {WS_OFF}")
    a(f"s_mul_i32 s49, s{sSL}, {TS}")
    a(f"s_mul_i32 s50, s{sBK}, {NPB*256}")
    a(f"s_lshl_b32 s51, s{sSL}, 7")
    a(f"s_add_u32 s52, s50, s51")
    a(f"s_lshr_b32 s53, s{sWV}, 1")
    a(f"s_and_b32 s54, s{sWV}, 1")
    a("s_waitcnt lgkmcnt(0)")
    srd(a, 32, 46, NCH * 4, add="s48")
    a(f"buffer_load_dword v{vrem}, v{vbase}, s[32:35], 0 offen")
    srd(a, 8, 4, N * 256)
    a("s_cmp_eq_u32 s54, 0")
    a("s_cselect_b32 s6, s6, s42")
    a("s_cselect_b32 s7, s7, s43")
    srd(a, 12, 6, 32768)
    WL = REC; XL = REC + 32768
    a("s_lshl_b32 s55, s53, 12")
    a("s_add_u32 s56, s55, s51")
    a("s_lshl_b32 s57, s53, 11")
    a("s_lshl_b32 s58, s54, 14")
    a("s_add_u32 s57, s57, s58")
    a(f"s_add_u32 s57, s57, {WL}")
    a("s_mov_b32 m0, s57")
    a(f"v_xor_b32 v{t0}, 64, v{vW}")
    a(f"buffer_load_dwordx4 v{vW}, s[12:15], s56 offen lds")
    a("s_add_u32 s57, s57, 1024")
    a("s_mov_b32 m0, s57")
    a("s_add_u32 s56, s56, 2048")
    a(f"buffer_load_dwordx4 v{t0}, s[12:15], s56 offen lds")
    a("s_lshl_b32 s58, s54, 11")
    a("s_add_u32 s56, s55, s58")
    a(f"s_add_u32 s57, s56, {XL}")
    a("s_add_u32 s56, s56, s50")
    a("s_lshl_b32 s58, s54, 7")
    a(f"v_xor_b32 v{t0}, s58, v{vX}")
    a(f"v_xor_b32 v{t1}, 64, v{t0}")
    a("s_mov_b32 m0, s57")
    a("s_add_u32 s57, s57, 1024")
    a(f"buffer_load_dwordx4 v{t0}, s[8:11], s56 offen lds")
    a("s_mov_b32 m0, s57")
    a("s_add_u32 s56, s56, 1024")
    a(f"buffer_load_dwordx4 v{t1}, s[8:11], s56 offen lds")
    a(f"v_lshrrev_b32 v{t0}, 3, v0")
    a(f"v_and_b32 v{t1}, 7, v0")
    a(f"v_lshlrev_b32 v{t1}, 4, v{t1}")
    vOUT = 15
    a(f"v_lshl_or_b32 v{vOUT}, v{t0}, 8, v{t1}")
    a(f"buffer_load_dwordx4 {vr(XF,4)}, v{vOUT}, s[8:11], s52 offen")
    srd(a, 16, 40, 1024)
    a(f"v_lshlrev_b32 v{t0}, 1, v{vl}")
    WC = 16
    for m in range(4):
        a(f"buffer_load_ushort v{WC+m}, v{t0}, s[16:19], s51 offen offset:{256*m}")
    srd(a, 20, 44, N * 256)
    srd(a, 24, 46, (N + 1) * 256, add="s49", stride=256)
    srd(a, 28, 46, NCH * REC_STRIDE, add=hex(WS_REC))
    Z = 20
    for i in range(4):
        a(f"v_mov_b32 v{Z+i}, 0")
    for i in range(3):
        a(f"ds_write_b128 v{vt16}, {vr(Z,4)} offset:{16384*i}")
    a(f"s_movk_i32 s58, {(ZEND-49152)//16}")
    a("v_cmp_gt_u32 vcc, s58, v0")
    a("s_mov_b64 exec, vcc")
    a(f"ds_write_b128 v{vt16}, {vr(Z,4)} offset:49152")
    a("s_mov_b64 exec, -1")
    a(f"s_add_u32 s57, s55, {XL}")
    a(f"v_add_u32 v{vA}, s57, v{vA}")
    a("s_lshl_b32 s58, s54, 14")
    a(f"s_add_u32 s58, s58, {WL}")
    a(f"v_add_u32 v{vB}, s58, v{vB}")
    aA = [vA, 24, 25, 26]; aB = [vB, 27, 28, 29]
    for st in range(1, 4):
        a(f"v_xor_b32 v{aA[st]}, {64*st}, v{vA}")
    for q in range(1, 4):
        a(f"v_xor_b32 v{aB[q]}, {32*q}, v{vB}")
    a(f"v_and_b32 v{t1}, 3, v0")
    a(f"v_lshlrev_b32 v{vbase}, 13, v{vbase}")
    a(f"v_lshl_add_u32 v{vbase}, v{t1}, 4, v{vbase}")
    a("s_mov_b32 s60, 0")
    a("s_waitcnt vmcnt(9)")
    stamp(a, 1)
    a(f"v_and_b32 v{t0}, 0xffff, v{vrem}")
    a(f"v_lshrrev_b32 v{vrem}, 16, v{vrem}")
    a(f"v_lshl_add_u32 v{vbase}, v{t0}, 4, v{vbase}")
    a(f"v_sub_u32 v{vrem}, v{vrem}, v{t1}")
    R = 32
    RK = 68
    HA = 77
    veff = 30; vone = 31
    a("K2_ROUND:")
    for k in range(KMAX):
        a(f"v_cmpx_lt_i32 vcc, {4*k}, v{vrem}")
        a(f"buffer_load_dwordx4 {vr(R+4*k,4)}, v{vbase}, s[28:31], 0 offen offset:{64*k}")
    a("s_mov_b64 exec, -1")
    a(f"s_waitcnt vmcnt({KMAX}) lgkmcnt(0)")
    a("s_barrier")
    stamp(a, 2)
    if STAMP: a("s_waitcnt lgkmcnt(0)")
    a("s_cmp_lg_u32 s60, 0")
    a("s_cbranch_scc1 K2_NOGEMM")
    a(f"s_cmp_ge_u32 s{sWV}, 14")
    a("s_cbranch_scc1 K2_GEMMDONE")
    XA = 86
    WB = 102
    ACC = 68
    for st in range(4):
        a(f"ds_read_b128 {vr(XA+4*st,4)}, v{aA[st]}")
    def wrd(st, q):
        for u in range(2):
            a(f"ds_read_b64_tr_b16 {vr(WB+4*q+2*u,2)}, v{aB[q]} offset:{st*4096+u*512}")
    for q in range(4):
        wrd(0, q)
    for st in range(4):
        for q in range(4):
            a(f"s_waitcnt lgkmcnt({6 if st < 3 else 6-2*q})")
            d = ACC + 4 * q
            c = "0" if st == 0 else vr(d, 4)
            a(f"v_mfma_f32_16x16x32_bf16 {vr(d,4)}, {vr(XA+4*st,4)}, {vr(WB+4*q,4)}, {c}")
            if st < 3:
                a("s_nop 1")
                wrd(st + 1, q)
    a(f"v_lshrrev_b32 v{t0}, 4, v{vl}")
    a(f"v_and_b32 v{t1}, 15, v{vl}")
    a("s_cmp_eq_u32 s54, 0")
    a("s_cbranch_scc0 K2_GEMMU")
    a(f"v_lshlrev_b32 v{t1}, 4, v{t1}")
    a(f"v_lshl_or_b32 v{t0}, v{t0}, 10, v{t1}")
    a(f"v_add_u32 v{t0}, s55, v{t0}")
    a(f"s_mov_b32 s58, {f32(-LOG2E)}")
    a(f"v_mov_b32 v{t1}, {f32(-float(SHIFT))}")
    a("s_nop 1")
    for r in range(4):
        for q in range(4):
            a(f"v_fma_f32 v{XA+4*r+q}, v{ACC+4*q+r}, s58, v{t1}")
        a(f"ds_write_b128 v{t0}, {vr(XA+4*r,4)} offset:{AP+256*r}")
    a("s_branch K2_GEMMDONE")
    a("K2_GEMMU:")
    a(f"v_lshlrev_b32 v{t1}, 1, v{t1}")
    a(f"v_lshl_or_b32 v{t0}, v{t0}, 9, v{t1}")
    a("s_lshr_b32 s58, s55, 1")
    a(f"s_add_u32 s58, s58, {USTG}")
    a(f"v_add_u32 v{t0}, s58, v{t0}")
    a("s_nop 2")
    for q in range(4):
        for r2 in range(2):
            o = XA + 2 * q + r2
            a(f"v_cvt_pk_bf16_f32 v{o}, v{ACC+4*q+2*r2}, v{ACC+4*q+2*r2+1}")
            a(f"ds_write_b16 v{t0}, v{o} offset:{128*(2*r2)+32*q}")
            a(f"ds_write_b16_d16_hi v{t0}, v{o} offset:{128*(2*r2+1)+32*q}")
    a("K2_GEMMDONE:")
    a(f"s_mov_b32 s58, {f32(-LOG2E)}")
    for m in range(4):
        a(f"v_lshlrev_b32 v{WC+m}, 16, v{WC+m}")
        a(f"v_mul_f32 v{WC+m}, s58, v{WC+m}")
    a(f"v_cvt_pk_bf16_f32 v{WC}, v{WC}, v{WC+1}")
    a(f"v_cvt_pk_bf16_f32 v{WC+1}, v{WC+2}, v{WC+3}")
    a("K2_NOGEMM:")
    stamp(a, 3)
    a(f"s_mov_b32 s61, {4*KMAX}")
    a(f"v_mov_b32 v{vone}, 1")
    a("K2_RANK:")
    a("s_sub_u32 s58, s61, 3")
    a(f"v_min_i32 v{veff}, s58, v{vrem}")
    a(f"v_cmpx_lt_i32 vcc, s61, v{vrem}")
    a(f"v_mov_b32 v{t0}, {FLAG}")
    a(f"ds_write_b32 v{t0}, v{vone}")
    a("s_mov_b64 exec, -1")
    for k in range(KMAX):
        a(f"v_cmpx_lt_i32 vcc, {4*k}, v{veff}")
        a(f"s_waitcnt vmcnt({KMAX-1-k})")
        a(f"v_lshrrev_b32 v{HA+k}, 6, v{R+4*k+3}")
        a(f"ds_add_rtn_u32 v{RK+k}, v{HA+k}, v{vone} offset:{HIST}")
    a("s_mov_b64 exec, -1")
    a(f"v_lshlrev_b32 v{t0}, 3, v{vl}")
    a(f"v_mov_b32 v{t1}, {FLAG}")
    a("s_waitcnt lgkmcnt(0)")
    a("s_barrier")
    S0 = 86
    stamp(a, 4)
    if STAMP: a("s_waitcnt lgkmcnt(0)")
    a(f"ds_read_b64 {vr(S0,2)}, v{t0} offset:{HIST}")
    a(f"ds_read_b32 v{S0+2}, v{t1}")
    a("s_waitcnt lgkmcnt(1)")
    a(f"v_add_u32 v{S0+4}, 1, v{S0}")
    a(f"v_add_u32 v{S0+5}, 1, v{S0+1}")
    a(f"v_lshrrev_b32 v{S0+4}, 1, v{S0+4}")
    a(f"v_lshrrev_b32 v{S0+5}, 1, v{S0+5}")
    a(f"v_add_u32 v{S0+6}, v{S0+4}, v{S0+5}")
    a(f"v_mov_b32 v{S0+7}, v{S0+6}")
    wave_scan(a, S0 + 7)
    a(f"v_sub_u32 v{S0+8}, v{S0+7}, v{S0+6}")
    a(f"v_add_u32 v{S0+9}, v{S0+8}, v{S0+4}")
    a(f"v_readlane_b32 s62, v{S0+7}, 63")
    a("s_waitcnt lgkmcnt(0)")
    a(f"v_readfirstlane_b32 s63, v{S0+2}")
    a(f"s_cmp_le_u32 s62, {CAPT}")
    a("s_cbranch_scc1 K2_FITS")
    a("s_cmp_eq_u32 s61, 16")
    a("s_cbranch_scc1 K2_END")
    a("s_barrier")
    a("s_movk_i32 s58, 33")
    a("v_cmp_gt_u32 vcc, s58, v0")
    a("s_mov_b64 exec, vcc")
    for i in range(4):
        a(f"v_mov_b32 v{Z+i}, 0")
    a(f"ds_write_b128 v{vt16}, {vr(Z,4)} offset:{HIST}")
    a("s_mov_b64 exec, -1")
    a("s_mov_b32 s61, 16")
    a("s_waitcnt lgkmcnt(0)")
    a("s_barrier")
    a("s_branch K2_RANK")
    a("K2_FITS:")
    a(f"s_mov_b32 s58, {REC}")
    a(f"v_lshl_add_u32 v{S0+8}, v{S0+8}, 5, s58")
    a(f"v_lshl_add_u32 v{S0+9}, v{S0+9}, 5, s58")
    a(f"ds_write_b64 v{t0}, {vr(S0+8,2)} offset:{START}")
    a("s_add_u32 s64, s62, 63")
    a("s_lshr_b32 s64, s64, 6")
    a("s_max_u32 s64, s64, 16")
    for k in range(KMAX):
        a(f"v_cmpx_lt_i32 vcc, {4*k}, v{veff}")
        a(f"ds_read_b32 v{HA+k}, v{HA+k} offset:{START}")
    a("s_mov_b64 exec, -1")
    D0 = 100
    a(f"v_mov_b32 v{D0}, 0")
    a(f"v_mov_b32 v{D0+1}, 0")
    a(f"v_mov_b32 v{D0+2}, {N}")
    a(f"v_mov_b32 v{D0+3}, {NPB*256}")
    a("s_lshl_b32 s58, s64, 6")
    a("s_add_u32 s58, s58, 4")
    a("s_sub_u32 s58, s58, s62")
    a("s_lshl_b32 s58, s58, 1")
    a("s_lshl_b32 s59, s62, 5")
    a(f"s_add_u32 s59, s59, {REC}")
    a(f"v_add_u32 v{D0+4}, s59, v{vt16}")
    a(f"v_sub_u32 v{D0+5}, s58, v0")
    for i in range(3):
        a(f"v_cmpx_lt_i32 vcc, 0, v{D0+5}")
        a("s_cbranch_execz K2_FILLED")
        a(f"ds_write_b128 v{D0+4}, {vr(D0,4)} offset:{16384*i}")
        a(f"v_subrev_u32 v{D0+5}, 0x400, v{D0+5}")
    a("K2_FILLED:")
    a("s_mov_b64 exec, -1")
    a(f"s_cmp_lt_u32 s{sWV}, 15")
    a("s_cbranch_scc1 K2_NODUMMY")
    for h in range(2):
        a(f"v_lshlrev_b32 v{D0+3}, 9, v{vl}")
        if h:
            a(f"v_add_u32 v{D0+3}, 0x100, v{D0+3}")
        a(f"v_lshl_add_u32 v{D0+4}, v{S0+h}, 4, v{S0+8+h}")
        a(f"v_and_b32 v{D0+5}, 1, v{S0+h}")
        a(f"v_cmpx_eq_u32 vcc, 1, v{D0+5}")
        a(f"ds_write_b128 v{D0+4}, {vr(D0,4)}")
        a("s_mov_b64 exec, -1")
        a("s_nop 0")
    a("K2_NODUMMY:")
    a("s_waitcnt lgkmcnt(0)")
    for k in range(KMAX):
        a(f"v_cmpx_lt_i32 vcc, {4*k}, v{veff}")
        a(f"v_lshl_add_u32 v{HA+k}, v{RK+k}, 4, v{HA+k}")
        a(f"ds_write_b128 v{HA+k}, {vr(R+4*k,4)}")
    a("s_mov_b64 exec, -1")
    G = [24, 36]
    T = [48, 56]
    H = [64, 72]
    AOP = 80
    APR = 88
    IDX = 92
    NO = 96
    AAD = 97
    P_, D_, N_ = 102, 106, 110
    ACCD, ACCN = 114, 118
    ID = 122
    vrs, vra, vinc, v12c, vF, vZ = 124, 125, 126, 127, 9, 10
    vTL = 101
    a(f"v_and_b32 v{t0}, 15, v{vl}")
    a(f"v_lshlrev_b32 v{IDX+1}, 4, v{t0}")
    a(f"v_mov_b32 v{IDX+3}, v{IDX+1}")
    a(f"v_mul_u32_u24 v{v12c}, 12, v{t0}")
    a(f"v_and_b32 v{t0}, 1, v{vl}")
    a(f"v_lshlrev_b32 v{t0}, 4, v{t0}")
    a("s_movk_i32 s58, 0x3f80")
    a(f"v_lshlrev_b32 v{t0}, v{t0}, s58")
    a(f"v_and_b32 v{t1}, 2, v{vl}")
    a(f"v_cmp_eq_u32 vcc, 0, v{t1}")
    a(f"v_lshrrev_b32 v{vW}, 4, v{vl}")
    a(f"v_bfe_u32 v{vX}, v{vl}, 2, 2")
    a(f"v_cndmask_b32 v{ID}, 0, v{t0}, vcc")
    a(f"v_cndmask_b32 v{ID+1}, v{t0}, 0, vcc")
    a(f"v_cmp_eq_u32 vcc, v{vW}, v{vX}")
    a(f"s_lshl_b32 s58, s64, 5")
    a(f"s_lshl_b32 s59, s{sWV}, 2")
    a(f"v_cndmask_b32 v{AOP+2}, 0, v{ID}, vcc")
    a(f"v_cndmask_b32 v{AOP+3}, 0, v{ID+1}, vcc")
    a(f"v_mov_b32 v{AOP+6}, v{AOP+2}")
    a(f"v_mov_b32 v{AOP+7}, v{AOP+3}")
    a("s_mul_i32 s59, s59, s58")
    a(f"s_add_u32 s59, s59, {REC}")
    a(f"v_mov_b32 v{t1}, s59")
    a(f"v_mad_u32_u24 v{vrs}, v{vW}, s58, v{t1}")
    a(f"v_mad_u32_u24 v{vra}, v{vX}, s58, v{t1}")
    a(f"v_lshrrev_b32 v{vTL}, 2, v{IDX+1}")
    a(f"v_add_u32 v{vTL}, v{vTL}, v{vrs}")
    a(f"v_and_b32 v{t0}, 3, v{vl}")
    a(f"v_cmp_eq_u32 vcc, v{vW}, v{t0}")
    a(f"v_mov_b32 v{vZ}, {ZERO}")
    a(f"v_mov_b32 v{t0}, 0x80")
    a(f"v_cndmask_b32 v{vra}, v{vZ}, v{vra}, vcc")
    a(f"v_cndmask_b32 v{vinc}, 0, v{t0}, vcc")
    for i in range(8):
        a(f"v_mov_b32 v{ACCD+i}, 0")
    a(f"s_mov_b32 s66, {f32(2.0**-SHIFT)}")
    a("s_mov_b32 s67, s66")
    a("s_waitcnt lgkmcnt(0)")
    for g in G:
        for o in (0, 6):
            a(f"v_mov_b32 v{g+o}, v{WC}")
            a(f"v_mov_b32 v{g+o+1}, v{WC+1}")
    a("s_barrier")
    stamp(a, 5)
    if STAMP: a("s_waitcnt lgkmcnt(0)")

    def gload(st):
        g = G[st & 1]
        if OPT.get("nogather"):
            return
        a(f"buffer_load_dwordx4 {vr(g+2,4)}, {vr(IDX,2)}, s[24:27], 0 idxen offen")
        a(f"buffer_load_dwordx4 {vr(g+8,4)}, {vr(IDX+2,2)}, s[24:27], 0 idxen offen")
    def rd_idx(p):
        a(f"ds_read_b32 v{IDX}, v{vrs} offset:{32*p+8}")
        a(f"ds_read_b32 v{IDX+2}, v{vrs} offset:{32*p+24}")
    def rd_no(p, dst=NO):
        a(f"ds_read_b32 v{dst}, v{vrs} offset:{32*p+12}")
    def rd_a(p, aad):
        a(f"ds_read_b128 {vr(APR,4)}, v{aad} offset:{AP}")
        a(f"ds_read_b64 {vr(AOP,2)}, v{vra} offset:{32*p}")
        a(f"ds_read_b64 {vr(AOP+4,2)}, v{vra} offset:{32*p+16}")
    def mf(st):
        g, t, h = G[st & 1], T[st & 1], H[st & 1]
        return [f"v_mfma_f32_16x16x32_bf16 {vr(t,4)}, {vr(AOP,4)}, {vr(g,4)}, {vr(APR,4)}",
                f"v_mfma_f32_16x16x32_bf16 {vr(t+4,4)}, {vr(AOP+4,4)}, {vr(g+6,4)}, {vr(APR,4)}",
                f"v_mfma_f32_4x4x4_16b_bf16 {vr(h,4)}, {vr(ID,2)}, {vr(g+4,2)}, 0",
                f"v_mfma_f32_4x4x4_16b_bf16 {vr(h+4,4)}, {vr(ID,2)}, {vr(g+10,2)}, 0"]
    MK = [68, 70]
    rd_idx(0)
    rd_no(0, AAD)
    rd_no(1, AAD + 1)
    a("s_waitcnt lgkmcnt(2)")
    gload(0)
    rd_idx(1)
    a("s_waitcnt lgkmcnt(2)")
    a(f"v_add_u32 v{AAD}, v{AAD}, v{IDX+1}")
    a(f"v_add_u32 v{AAD+1}, v{AAD+1}, v{IDX+1}")
    a("s_waitcnt lgkmcnt(0)")
    gload(1)
    rd_a(0, AAD)
    rd_idx(2)
    a(f"v_cmp_ne_u32 s[{MK[0]}:{MK[0]+1}], v{AAD}, v{AAD+1}")
    a("s_waitcnt vmcnt(2) lgkmcnt(0)")
    for m in mf(0):
        a(m)
    gload(2)
    a("s_nop 1")
    rd_a(1, AAD + 1)
    rd_idx(3)
    rd_no(2)
    a("s_mov_b32 s65, s64")
    stamp(a, 6)
    if STAMP: a("s_waitcnt lgkmcnt(0)")
    a(".p2align 5")
    a("K2_LOOP:")
    def pk(op, d, x, y, z=None):
        for i in (0, 2):
            if z is None:
                a(f"v_pk_{op}_f32 {vr(d+i,2)}, {vr(x+i,2)}, {vr(y+i,2)}")
            else:
                a(f"v_pk_{op}_f32 {vr(d+i,2)}, {vr(x+i,2)}, {vr(y+i,2)}, {vr(z+i,2)}")
    def flush(j):
        a(f"v_sub_u32 v{vF}, v{AAD+j}, v{v12c}")
        op = "ds_write_b32"
        for q in range(4):
            a(f"{op} v{vF}, v{ACCD+q} offset:{DEN+64*q}")
        for q in range(4):
            a(f"{op} v{vF}, v{ACCN+q} offset:{NUM+64*q}")
    for j in range(4):
        t, h = T[j & 1], H[j & 1]
        e = [f"v_exp_f32_e64 v{t+i}, v{t+i} clamp" for i in range(8)]
        m = mf(j + 1)
        a("s_waitcnt vmcnt(2) lgkmcnt(3)")
        for x in (e[0], m[0], e[1], m[1], e[2], m[2], e[3], m[3], e[4]):
            a(x)
        a("s_cmp_gt_u32 s65, 3")
        a("s_waitcnt lgkmcnt(0)")
        a(f"s_cbranch_scc0 K2_SKIP{j}")
        gload(j + 1)
        a(f"K2_BACK{j}:")
        a(e[5])
        a(f"v_add_u32 v{AAD+(j+2)%4}, v{NO}, v{IDX+1}")
        a(e[6])
        rd_a(j + 2, AAD + (j + 2) % 4)
        rd_idx(j + 4)
        rd_no(j + 3)
        a(e[7])
        mk = MK[(j + 1) & 1]
        a(f"v_cmp_ne_u32 s[{mk}:{mk+1}], v{AAD+(j+1)%4}, v{AAD+(j+2)%4}")
        for i in range(4):
            a(f"v_pk_add_f32 {vr(t+2*i,2)}, {vr(t+2*i,2)}, s[66:67]")
        pk("mul", P_, t, t + 4)
        pk("add", D_, t, t + 4)
        pk("mul", N_, h, t + 4)
        for i in range(4):
            a(f"v_rcp_f32 v{P_+i}, v{P_+i}")
        pk("fma", N_, h + 4, t, N_)
        if j == 3:
            a(f"v_add_u32 v{vrs}, 0x80, v{vrs}")
            a(f"v_add_u32 v{vra}, v{vinc}, v{vra}")
        pk("fma", ACCD, D_, P_, ACCD)
        pk("fma", ACCN, N_, P_, ACCN)
        a("s_sub_u32 s65, s65, 1")
        a("s_cmp_eq_u32 s65, 0")
        a(f"s_cbranch_scc1 K2_MAINDONE")
        mk = MK[j & 1]
        a(f"s_cmp_lg_u64 s[{mk}:{mk+1}], 0")
        if not OPT.get("noflush"):
            a(f"s_cbranch_scc1 K2_FLUSH{j}")
        if j == 3:
            a("s_branch K2_LOOP")
        else:
            a(f"K2_FBACK{j}:")
    for j in range(4):
        a(f"K2_SKIP{j}:")
        a("s_waitcnt vmcnt(0)")
        a(f"s_branch K2_BACK{j}")
        a(f"K2_FLUSH{j}:")
        mk = MK[j & 1]
        a(f"s_mov_b64 exec, s[{mk}:{mk+1}]")
        flush(j)
        a(f"ds_read_b128 {vr(ACCD,4)}, v{vZ}")
        a(f"ds_read_b128 {vr(ACCN,4)}, v{vZ}")
        a("s_mov_b64 exec, -1")
        a("s_branch K2_LOOP" if j == 3 else f"s_branch K2_FBACK{j}")
    a("K2_MAINDONE:")
    stamp(a, 7)
    a("s_waitcnt lgkmcnt(0)")
    for q in range(4):
        a(f"ds_write_b32 v{vTL}, v{ACCD+q} offset:{64*q}")
    for q in range(4):
        a(f"ds_write_b32 v{vTL}, v{ACCN+q} offset:{256+64*q}")
    a(f"v_lshrrev_b32 v{t0}, 3, v0")
    a(f"v_lshlrev_b32 v11, 2, v{t0}")
    a(f"v_add_u32 v11, {START}, v11")
    a(f"ds_read2_b32 v[12:13], v11 offset0:0 offset1:1")
    a("v_cvt_f32_u32 v14, s64")
    a("v_rcp_f32 v14, v14")
    a(f"s_movk_i32 s58, {NPB*8}")
    a("v_cmp_gt_u32 vcc, s58, v0")
    a(f"v_mul_f32 v14, {f32(2.0**20)}, v14")
    a("v_cvt_u32_f32 v14, v14")
    a("v_add_u32 v14, 1, v14")
    a(f"v_and_b32 v{t1}, 7, v0")
    a(f"v_lshlrev_b32 v18, 5, v{t1}")
    a(f"v_lshl_or_b32 v11, v{t0}, 8, v18")
    a(f"v_lshrrev_b32 v19, 1, v11")
    a(f"v_add_u32 v19, {USTG}, v19")
    a("s_lshl_b32 s59, s64, 5")
    a("s_waitcnt lgkmcnt(0)")
    for i in range(2):
        a(f"v_subrev_u32 v{12+i}, {REC}, v{12+i}")
        a(f"v_lshrrev_b32 v{12+i}, 5, v{12+i}")
        a(f"v_mul_u32_u24 v{12+i}, v{12+i}, v14")
        a(f"v_lshrrev_b32 v{12+i}, 20, v{12+i}")
    a("v_sub_u32 v13, v13, v12")
    a("v_mad_u32_u24 v12, v12, s59, v18")
    a(f"v_add_u32 v12, {REC}, v12")
    a("s_waitcnt vmcnt(0) lgkmcnt(0)")
    a("s_barrier")
    stamp(a, 8)
    if STAMP: a("s_waitcnt lgkmcnt(0)")
    a("s_mov_b64 exec, vcc")
    a("s_mov_b64 s[68:69], vcc")
    FD, FN, FU = 24, 32, 40
    TD = 64
    a(f"ds_read_b128 {vr(FD,4)}, v11 offset:{DEN}")
    a(f"ds_read_b128 {vr(FD+4,4)}, v11 offset:{DEN+16}")
    a(f"ds_read_b128 {vr(FN,4)}, v11 offset:{NUM}")
    a(f"ds_read_b128 {vr(FN+4,4)}, v11 offset:{NUM+16}")
    a(f"ds_read_b128 {vr(FU,4)}, v19")
    a("K2_TAILS:")
    a("v_cmpx_lt_i32 vcc, 0, v13")
    a("s_cbranch_execz K2_TAILSDONE")
    a(f"ds_read_b128 {vr(TD,4)}, v12")
    a(f"ds_read_b128 {vr(TD+4,4)}, v12 offset:16")
    a(f"ds_read_b128 {vr(TD+8,4)}, v12 offset:256")
    a(f"ds_read_b128 {vr(TD+12,4)}, v12 offset:272")
    a("v_add_u32 v12, s59, v12")
    a("v_subrev_u32 v13, 1, v13")
    a("s_waitcnt lgkmcnt(0)")
    for i in range(8):
        a(f"v_pk_add_f32 {vr(FD+2*i,2)}, {vr(FD+2*i,2)}, {vr(TD+2*i,2)}")
    a("s_branch K2_TAILS")
    a("K2_TAILSDONE:")
    a("s_mov_b64 exec, s[68:69]")
    a("s_or_b32 s58, s60, s63")
    a("s_cmp_eq_u32 s58, 0")
    a("s_cbranch_scc1 K2_FINAL")
    a("s_lshl_b32 s58, s2, 16")
    a(f"s_add_u32 s58, s58, {WS_SPILL}")
    srd(a, 32, 46, 65536, add="s58")
    a(f"v_lshlrev_b32 v18, 2, v{vt16}")
    a("s_waitcnt lgkmcnt(0)")
    a("s_cmp_eq_u32 s60, 0")
    a("s_cbranch_scc1 K2_NOSPILLIN")
    for i in range(4):
        a(f"buffer_load_dwordx4 {vr(TD+4*i,4)}, v18, s[32:35], 0 offen offset:{16*i} sc1")
    a("s_waitcnt vmcnt(0)")
    for i in range(8):
        a(f"v_pk_add_f32 {vr(FD+2*i,2)}, {vr(FD+2*i,2)}, {vr(TD+2*i,2)}")
    a("K2_NOSPILLIN:")
    a("s_cmp_eq_u32 s63, 0")
    a("s_cbranch_scc1 K2_FINAL")
    for i in range(4):
        a(f"buffer_store_dwordx4 {vr(FD+4*i,4)}, v18, s[32:35], 0 offen offset:{16*i} sc1")
    for i in range(4):
        a(f"v_mov_b32 v{Z+i}, 0")
    for o in (DEN, DEN + 16, NUM, NUM + 16):
        a(f"ds_write_b128 v11, {vr(Z,4)} offset:{o}")
    a("s_mov_b64 exec, -1")
    for i in range(4):
        a(f"v_mov_b32 v{Z+i}, 0")
    a("s_movk_i32 s58, 33")
    a("v_cmp_gt_u32 vcc, s58, v0")
    a("s_mov_b64 exec, vcc")
    a(f"ds_write_b128 v{vt16}, {vr(Z,4)} offset:{HIST}")
    a("s_mov_b64 exec, -1")
    a(f"v_subrev_u32 v{vrem}, s61, v{vrem}")
    a("s_lshl_b32 s58, s61, 4")
    a(f"v_add_u32 v{vbase}, s58, v{vbase}")
    a("s_add_u32 s60, s60, 1")
    a("s_waitcnt vmcnt(0)")
    a("s_cmp_le_u32 s60, 128")
    a("s_cbranch_scc1 K2_ROUND")
    a("s_endpgm")
    a("K2_FINAL:")
    a(f"s_mov_b32 s58, {f32(1e-6 * 2.0**SHIFT)}")
    XU = 48
    for i in range(4):
        a(f"v_lshlrev_b32 v{XU+2*i}, 16, v{XF+i}")
        a(f"v_and_b32 v{XU+2*i+1}, 0xffff0000, v{XF+i}")
    a("s_waitcnt lgkmcnt(0)")
    for i in range(8):
        a(f"v_add_f32 v{FD+i}, s58, v{FD+i}")
    for i in range(8):
        a(f"v_rcp_f32 v{FD+i}, v{FD+i}")
    for i in range(4):
        a(f"v_lshlrev_b32 v{XU+8+2*i}, 16, v{FU+i}")
        a(f"v_and_b32 v{XU+8+2*i+1}, 0xffff0000, v{FU+i}")
    for i in range(8):
        a(f"v_fmac_f32 v{XU+8+i}, v{FN+i}, v{FD+i}")
    for i in range(8):
        a(f"v_max_f32 v{XU+8+i}, 0, v{XU+8+i}")
    for i in range(8):
        a(f"v_add_f32 v{XU+i}, v{XU+i}, v{XU+8+i}")
    for i in range(4):
        a(f"v_cvt_pk_bf16_f32 v{FD+i}, v{XU+2*i}, v{XU+2*i+1}")
    a(f"buffer_store_dwordx4 {vr(FD,4)}, v{vOUT}, s[20:23], s52 offen")
    a("K2_FIN:")
    stamp(a, 9)
    stamp_out(a, 10, 46, sWV, 0)
    a("K2_END:")
    a("s_endpgm")

HEADER = """; GatedGCN message passing, two launches.
"""

def descriptor(name, vgpr, sgpr):
    return f""".p2align 6
.amdhsa_kernel {name}
  .amdhsa_next_free_vgpr {vgpr}
  .amdhsa_next_free_sgpr {sgpr}
  .amdhsa_accum_offset {(vgpr+3)//4*4}
  .amdhsa_group_segment_fixed_size 0
  .amdhsa_kernarg_size 96
  .amdhsa_user_sgpr_count 2
  .amdhsa_user_sgpr_kernarg_segment_ptr 1
  .amdhsa_system_sgpr_workgroup_id_x 1
  .amdhsa_float_denorm_mode_32 3
.end_amdhsa_kernel
"""

def main():
    out = HEADER
    out += f"; @launch kernel=k1_kernel grid=({NGEMM+NCH},1,1) block=(512,1,1) lds=65536\n"
    out += f"; @launch kernel=k2_kernel grid=(256,1,1) block=(1024,1,1) lds={K2_LDS}\n"
    out += '.amdgcn_target "amdgcn-amd-amdhsa--gfx950"\n.text\n'
    for name, g in (("k1_kernel", gen_k1), ("k2_kernel", gen_k2)):
        a = A()
        g(a)
        out += f".globl {name}\n.p2align 8\n.type {name},@function\n" + a.text()
    out += '.section .rodata,"a"\n'
    out += descriptor("k1_kernel", 100, 64)
    out += descriptor("k2_kernel", 128, 102 if STAMP else 80)
    path = sys.argv[1] if len(sys.argv) > 1 else "standalone__edge_featured_mpnn_gatedgcn__graph.s"
    open(path, "w").write(out)

main()
```

```python
import sys, struct

N = 12500
E = 400000
NPB = 98
NBK = 128
NCH = 250
CHE = 1600
NGEMM = 196
TS = 0x310000
WS_REC = 0x800000
REC_STRIDE = 32768
WS_OFF = 0x1000000
WS_SPILL = 0x4000000
LOG2E = 1.4426950408889634
SHIFT = 40

def f32(x):
    return "0x%08x" % struct.unpack("<I", struct.pack("<f", x))[0]

import os
STAMP = os.environ.get("STAMP") == "1"
OPT = dict(kv.split("=") for kv in os.environ.get("OPT", "").split(",") if kv)
WS_STAMP = 0x2000000
def stamp(a, i):
    if STAMP:
        a(f"s_memtime s[{80+2*i}:{81+2*i}]")
        if i == 0:
            a("s_memrealtime s[100:101]")
def stamp_out(a, n, wsptr, wave_sreg, base):
    if not STAMP:
        return
    a("s_memrealtime s[78:79]")
    a("s_waitcnt vmcnt(0) lgkmcnt(0)")
    a("s_mov_b64 exec, 1")
    srd(a, 72, wsptr, 1 << 20, add=hex(WS_STAMP + base))
    a(f"s_lshl_b32 s76, s2, 4")
    a(f"s_add_u32 s76, s76, s{wave_sreg}")
    a(f"s_lshl_b32 s76, s76, 6")
    a("v_mov_b32 v1, s76")
    for i in range(n):
        a(f"v_mov_b32 v2, s{80+2*i}")
        a(f"buffer_store_dword v2, v1, s[72:75], 0 offen offset:{4*i}")
        a("s_nop 1")
    a("v_mov_b32 v2, s100")
    a(f"buffer_store_dword v2, v1, s[72:75], 0 offen offset:56")
    a("s_nop 1")
    a("v_mov_b32 v2, s78")
    a(f"buffer_store_dword v2, v1, s[72:75], 0 offen offset:60")
    a("s_waitcnt vmcnt(0)")

DBG = os.environ.get("DBG") == "1"
def dbg_start(a):
    if DBG:
        a("s_memrealtime s[100:101]")
        a("s_memtime s[98:99]")
        a("s_load_dwordx2 s[96:97], s[0:1], 80")
def dbg_end(a, kid):
    if not DBG:
        return
    a("s_waitcnt vmcnt(0) lgkmcnt(0)")
    a("s_memrealtime s[94:95]")
    a("s_memtime s[92:93]")
    a("s_waitcnt lgkmcnt(0)")
    a("s_mov_b64 exec, 1")
    srd(a, 72, 96, 256)
    a("s_not_b32 s100, s100")
    a("s_sub_u32 s92, s92, s98")
    a("v_mov_b32 v1, 0")
    a(f"v_mov_b32 v2, {kid}")
    a("v_mov_b32 v3, s100")
    a("v_mov_b32 v4, s94")
    a("v_mov_b32 v5, s92")
    a("buffer_atomic_umax v2, v1, s[72:75], 0 offen")
    a("buffer_atomic_umax v3, v1, s[72:75], 0 offen offset:4")
    a("buffer_atomic_umax v4, v1, s[72:75], 0 offen offset:8")
    a("buffer_atomic_umax v5, v1, s[72:75], 0 offen offset:12")
    a("s_waitcnt vmcnt(0)")

class A:
    def __init__(self):
        self.l = []
    def __call__(self, s=""):
        for line in s.split("\n"):
            line = line.strip()
            if not line:
                continue
            if line.endswith(":"):
                self.l.append(line)
            else:
                self.l.append("    " + line)
    def text(self):
        return "\n".join(self.l) + "\n"

def vr(b, n):
    return f"v[{b}:{b+n-1}]" if n > 1 else f"v{b}"
def sr(b, n):
    return f"s[{b}:{b+n-1}]" if n > 1 else f"s{b}"

def srd(a, d, ptr, size, add=None, stride=0):
    if add is None:
        a(f"s_mov_b32 s{d}, s{ptr}")
        a(f"s_and_b32 s{d+1}, s{ptr+1}, 0xffff")
    else:
        a(f"s_add_u32 s{d}, s{ptr}, {add}")
        a(f"s_addc_u32 s{d+1}, s{ptr+1}, 0")
        a(f"s_and_b32 s{d+1}, s{d+1}, 0xffff")
    if stride:
        a(f"s_or_b32 s{d+1}, s{d+1}, {hex(stride << 16)}")
    a(f"s_mov_b32 s{d+2}, {size}")
    a(f"s_mov_b32 s{d+3}, 0x00020000")

def wave_scan(a, v):
    for sh in (1, 2, 4, 8):
        a("s_nop 1")
        a(f"v_add_u32_dpp v{v}, v{v}, v{v} row_shr:{sh} row_mask:0xf bank_mask:0xf bound_ctrl:0")
    a("s_nop 1")
    a(f"v_add_u32_dpp v{v}, v{v}, v{v} row_bcast:15 row_mask:0xa bank_mask:0xf")
    a("s_nop 1")
    a(f"v_add_u32_dpp v{v}, v{v}, v{v} row_bcast:31 row_mask:0xc bank_mask:0xf")

def gemm_lane_addrs(a, vl, vW, vX, vA, vB, t0, t1):
    a(f"v_lshrrev_b32 v{t0}, 3, v{vl}")
    a(f"v_and_b32 v{t1}, 2, v{t0}")
    a(f"v_and_b32 v{vW}, 7, v{vl}")
    a(f"v_xor_b32 v{vW}, v{vW}, v{t1}")
    a(f"v_lshlrev_b32 v{vW}, 4, v{vW}")
    a(f"v_lshl_or_b32 v{vW}, v{t0}, 8, v{vW}")
    a(f"v_lshrrev_b32 v{t0}, 4, v{vl}")
    a(f"v_and_b32 v{t1}, 15, v{vl}")
    a(f"v_xor_b32 v{vX}, v{t1}, v{t0}")
    a(f"v_lshlrev_b32 v{vX}, 4, v{vX}")
    a(f"v_lshl_or_b32 v{vA}, v{t1}, 8, v{vX}")
    a(f"v_lshl_or_b32 v{vX}, v{t0}, 8, v{vX}")
    a(f"v_bfe_u32 v{t1}, v{vl}, 2, 2")
    a(f"v_lshl_add_u32 v{vB}, v{t0}, 3, v{t1}")
    a(f"v_lshlrev_b32 v{vB}, 7, v{vB}")
    a(f"v_and_b32 v{t1}, 2, v{t1}")
    a(f"v_and_b32 v{t0}, 1, v{t0}")
    a(f"v_lshl_or_b32 v{t1}, v{t0}, 2, v{t1}")
    a(f"v_bfe_u32 v{t0}, v{vl}, 1, 1")
    a(f"v_xor_b32 v{t0}, v{t0}, v{t1}")
    a(f"v_lshl_or_b32 v{vB}, v{t0}, 4, v{vB}")
    a(f"v_and_b32 v{t0}, 1, v{vl}")
    a(f"v_lshl_or_b32 v{vB}, v{t0}, 3, v{vB}")

def gen_k1(a):
    a("k1_kernel:")
    a(f"s_cmp_ge_u32 s2, {NGEMM + NCH}")
    a("s_cbranch_scc1 K1_END")
    stamp(a, 0)
    dbg_start(a)
    a(f"s_cmp_ge_u32 s2, {NGEMM}")
    a("s_cbranch_scc1 K1_PART")
    a("s_load_dwordx2 s[4:5], s[0:1], 0")
    a("s_load_dwordx2 s[6:7], s[0:1], 40")
    a("s_load_dwordx2 s[28:29], s[0:1], 64")
    a("s_load_dwordx2 s[30:31], s[0:1], 88")
    vl, vW, vX, vA, vB, t0, t1 = 1, 2, 3, 4, 5, 6, 7
    a(f"v_and_b32 v{vl}, 63, v0")
    a(f"v_lshrrev_b32 v{t0}, 6, v0")
    a("s_and_b32 s33, s2, 1")
    a(f"v_readfirstlane_b32 s32, v{t0}")
    a("s_lshr_b32 s34, s2, 1")
    gemm_lane_addrs(a, vl, vW, vX, vA, vB, t0, t1)
    a(f"v_xor_b32 v8, 64, v{vW}")
    a(f"v_xor_b32 v9, 64, v{vX}")
    a(f"v_xor_b32 v10, 0x80, v{vX}")
    a(f"v_xor_b32 v11, 0xc0, v{vX}")
    a("s_lshl_b32 s35, s32, 12")
    a("s_lshl_b32 s36, s33, 7")
    a("s_add_u32 s36, s36, s35")
    a("s_add_u32 s37, s36, 2048")
    a("s_lshl_b32 s38, s34, 15")
    a("s_add_u32 s38, s38, s35")
    a("s_lshl_b32 s39, s32, 11")
    a("s_waitcnt lgkmcnt(0)")
    stamp(a, 1)
    srd(a, 8, 4, N * 256)
    srd(a, 12, 6, 32768)
    srd(a, 16, 28, 32768)
    a("s_mul_i32 s40, s33, %d" % TS)
    srd(a, 20, 30, N * 256, add="s40")
    a("s_mov_b32 m0, s39")
    a("s_add_u32 s41, s39, 1024")
    a(f"buffer_load_dwordx4 v{vW}, s[12:15], s36 offen lds")
    a("s_mov_b32 m0, s41")
    a("s_add_u32 s41, s39, 16384")
    a("buffer_load_dwordx4 v8, s[12:15], s37 offen lds")
    a("s_mov_b32 m0, s41")
    a("s_add_u32 s41, s39, 17408")
    a(f"buffer_load_dwordx4 v{vW}, s[16:19], s36 offen lds")
    a("s_mov_b32 m0, s41")
    a("s_add_u32 s41, s35, 32768")
    a("buffer_load_dwordx4 v8, s[16:19], s37 offen lds")
    xr = [vX, 9, 10, 11]
    for i in range(4):
        a("s_mov_b32 m0, s41")
        a("s_add_u32 s41, s41, 1024")
        a(f"buffer_load_dwordx4 v{xr[i]}, s[8:11], s38 offen lds")
        if i < 3:
            a("s_add_u32 s38, s38, 1024")
    a("s_sub_u32 s38, s38, 3072")
    a("s_add_u32 s41, s35, 32768")
    a(f"v_add_u32 v{vA}, s41, v{vA}")
    for st in range(1, 4):
        a(f"v_xor_b32 v{11+st}, {64*st}, v{vA}")
    for q in range(1, 4):
        a(f"v_xor_b32 v{14+q}, {32*q}, v{vB}")
    aA = [vA, 12, 13, 14]
    aB = [vB, 15, 16, 17]
    a(f"v_lshrrev_b32 v{t0}, 4, v{vl}")
    a(f"v_and_b32 v{t1}, 15, v{vl}")
    a(f"v_lshlrev_b32 v{t1}, 4, v{t1}")
    a(f"v_lshl_or_b32 v18, v{t0}, 10, v{t1}")
    stamp(a, 2)
    a("s_waitcnt vmcnt(0)")
    stamp(a, 3)
    a("s_barrier")
    stamp(a, 4)
    if STAMP: a("s_waitcnt lgkmcnt(0)")
    XA = 20
    for st in range(4):
        a(f"ds_read_b128 {vr(XA+4*st,4)}, v{aA[st]}")
    WB = 36
    ACC = 68
    seq = [(st, m) for st in range(4) for m in range(2)]
    def wreads_half(n):
        st, m = seq[n]
        base = WB + 16 * (n & 1)
        for q in range(4):
            for u in range(2):
                a(f"ds_read_b64_tr_b16 {vr(base+4*q+2*u,2)}, v{aB[q]} offset:{m*16384+st*4096+u*512}")
    wreads_half(0)
    for n, (st, m) in enumerate(seq):
        if n + 1 < len(seq):
            a("s_waitcnt lgkmcnt(4)")
            wreads_half(n + 1)
            a("s_waitcnt lgkmcnt(8)")
        else:
            a("s_waitcnt lgkmcnt(0)")
        base = WB + 16 * (n & 1)
        for q in range(4):
            d = ACC + 16 * m + 4 * q
            c = "0" if st == 0 else vr(d, 4)
            a(f"v_mfma_f32_16x16x32_bf16 {vr(d,4)}, {vr(XA+4*st,4)}, {vr(base+4*q,4)}, {c}")
    stamp(a, 5)
    a(f"s_mov_b32 s42, {f32(-LOG2E)}")
    a("s_mov_b32 s43, s42")
    a("s_nop 1")
    for i in range(8):
        a(f"v_pk_mul_f32 {vr(ACC+2*i,2)}, {vr(ACC+2*i,2)}, s[42:43]")
    for r in range(4):
        o = 20 + 4 * r
        a(f"v_cvt_pk_bf16_f32 v{o}, v{ACC+r}, v{ACC+4+r}")
        a(f"v_cvt_pk_bf16_f32 v{o+1}, v{ACC+8+r}, v{ACC+12+r}")
        a(f"v_cvt_pk_bf16_f32 v{o+2}, v{ACC+16+r}, v{ACC+20+r}")
        a(f"v_cvt_pk_bf16_f32 v{o+3}, v{ACC+24+r}, v{ACC+28+r}")
        a(f"buffer_store_dwordx4 {vr(o,4)}, v18, s[20:23], s38 offen offset:{256*r}")
    stamp(a, 6)
    a("s_or_b32 s41, s34, s32")
    a("s_cmp_lg_u32 s41, 0")
    a("s_cbranch_scc1 K1_GEND")
    a(f"s_mov_b32 s22, {(N+1)*256}")
    a(f"s_mov_b32 s41, {N*256}")
    a("v_mov_b32 v36, 0x70007000")
    a("v_mov_b32 v37, 0x70007000")
    a("v_mov_b32 v38, 0")
    a("v_mov_b32 v39, 0")
    a("s_mov_b64 exec, 0xffff")
    a(f"buffer_store_dwordx4 v[36:39], v18, s[20:23], s41 offen")
    a("K1_GEND:")
    dbg_end(a, 1)
    if STAMP:
        a("s_waitcnt vmcnt(0)")
        stamp(a, 7); stamp(a, 8); stamp(a, 9)
        stamp_out(a, 10, 30, 32, 0x100000)
    a("s_endpgm")
    a("K1_PART:")
    HIST, START, RECL = 0, 512, 1024
    a("s_load_dwordx2 s[4:5], s[0:1], 8")
    a("s_load_dwordx4 s[28:31], s[0:1], 16")
    a("s_load_dwordx2 s[6:7], s[0:1], 88")
    a(f"s_sub_u32 s32, s2, {NGEMM}")
    a(f"s_mul_i32 s33, s32, {CHE*4}")
    a("s_lshl_b32 s34, s33, 1")
    a("v_lshlrev_b32 v1, 4, v0")
    a("v_lshlrev_b32 v2, 5, v0")
    a("v_lshlrev_b32 v3, 2, v0")
    a("v_mov_b32 v40, 0")
    a("v_mov_b32 v41, 1")
    a(f"v_cmp_gt_u32 s[36:37], 64, v0")
    a(f"s_movk_i32 s35, {CHE//4}")
    a(f"v_cmp_gt_u32 s[38:39], s35, v0")
    a("s_movk_i32 s35, 128")
    a(f"v_cmp_gt_u32 vcc, s35, v0")
    a("s_mov_b64 exec, vcc")
    a(f"ds_write_b32 v3, v40 offset:{HIST}")
    a("s_mov_b64 exec, s[38:39]")
    a("s_waitcnt lgkmcnt(0)")
    stamp(a, 1)
    srd(a, 8, 30, E * 4)
    srd(a, 12, 28, E * 4)
    srd(a, 16, 4, E * 8)
    a("buffer_load_dwordx4 v[4:7], v1, s[8:11], s33 offen")
    a("buffer_load_dwordx4 v[8:11], v1, s[12:15], s33 offen")
    a("buffer_load_dwordx4 v[12:15], v2, s[16:19], s34 offen")
    a("buffer_load_dwordx4 v[16:19], v2, s[16:19], s34 offen offset:16")
    a("s_lshl_b32 s35, s32, 15")
    a(f"s_add_u32 s35, s35, {WS_REC}")
    srd(a, 20, 6, 0, add="s35")
    srd(a, 24, 6, NBK * 1024, add=hex(WS_OFF))
    a("s_movk_i32 s35, -98")
    a("s_barrier")
    a("s_waitcnt vmcnt(3)")
    stamp(a, 2)
    for j in range(4):
        a(f"v_mul_u32_u24 v{20+j}, 10700, v{4+j}")
        a(f"v_lshrrev_b32 v{20+j}, 20, v{20+j}")
        a(f"v_lshlrev_b32 v{24+j}, 2, v{20+j}")
        a(f"ds_add_rtn_u32 v{28+j}, v{24+j}, v41 offset:{HIST}")
    for j in range(4):
        a(f"v_mad_i32_i24 v{20+j}, v{20+j}, s35, v{4+j}")
        a(f"v_lshlrev_b32 v{33+2*j}, 8, v{20+j}")
    a("s_waitcnt vmcnt(2)")
    for j in range(4):
        a(f"v_mov_b32 v{32+2*j}, v{8+j}")
    a("s_mov_b64 exec, -1")
    a("v_and_b32 v42, 63, v0")
    a("v_lshlrev_b32 v42, 3, v42")
    a("s_waitcnt lgkmcnt(0)")
    a("s_barrier")
    stamp(a, 3)
    a(f"ds_read_b64 v[44:45], v42 offset:{HIST}")
    a("s_waitcnt lgkmcnt(0)")
    a("v_add_u32 v46, 3, v44")
    a("v_add_u32 v47, 3, v45")
    a("v_and_b32 v46, -4, v46")
    a("v_and_b32 v47, -4, v47")
    a("v_add_u32 v48, v46, v47")
    a("v_mov_b32 v49, v48")
    wave_scan(a, 49)
    a("v_sub_u32 v50, v49, v48")
    a("v_add_u32 v51, v50, v46")
    a("v_readlane_b32 s40, v49, 63")
    a(f"ds_write_b64 v42, v[50:51] offset:{START}")
    a("s_mov_b64 exec, s[38:39]")
    for j in range(4):
        a(f"ds_read_b32 v{20+j}, v{24+j} offset:{START}")
    a("s_lshl_b32 s22, s40, 4")
    if STAMP:
        a("s_waitcnt lgkmcnt(0)"); stamp(a, 4); a("s_waitcnt vmcnt(0) lgkmcnt(0)"); stamp(a, 5); a("s_waitcnt lgkmcnt(0)")
    a("s_mov_b64 exec, s[36:37]")
    a("v_lshl_or_b32 v52, v44, 16, v50")
    a("v_lshl_or_b32 v53, v45, 16, v51")
    a("v_lshlrev_b32 v54, 8, v42")
    a("s_lshl_b32 s41, s32, 2")
    a("buffer_store_dword v52, v54, s[24:27], s41 offen")
    a("buffer_store_dword v53, v54, s[24:27], s41 offen offset:1024")
    a("s_mov_b64 exec, s[38:39]")
    for j in range(4):
        a(f"s_waitcnt lgkmcnt({3-j})" if j else "s_waitcnt vmcnt(2) lgkmcnt(3)")
        a(f"v_add_lshl_u32 v{20+j}, v{20+j}, v{28+j}, 4")
    for j in range(4):
        a(f"ds_write2_b64 v{20+j}, {vr(12+2*j,2)}, {vr(32+2*j,2)} offset0:{RECL//8} offset1:{RECL//8+1}")
    a("s_mov_b64 exec, -1")
    a("s_waitcnt lgkmcnt(0)")
    a("s_barrier")
    stamp(a, 6)
    if STAMP: a("s_waitcnt lgkmcnt(0)")
    for i in range(4):
        a(f"ds_read_b128 {vr(4+4*i,4)}, v1 offset:{RECL+8192*i}" if i < 3 else
          f"ds_read_b128 {vr(4+4*i,4)}, v1 offset:{RECL+8192*i}")
    a("s_movk_i32 s41, 0x2000")
    a("s_movk_i32 s42, 0x4000")
    a("s_movk_i32 s43, 0x6000")
    so = ["0", "s41", "s42", "s43"]
    for i in range(4):
        a(f"s_waitcnt lgkmcnt({3-i})")
        a(f"buffer_store_dwordx4 {vr(4+4*i,4)}, v1, s[20:23], {so[i]} offen")
    if STAMP:
        stamp(a, 7)
        a("s_waitcnt vmcnt(0)")
        stamp(a, 8); stamp(a, 9)
        a("v_lshrrev_b32 v1, 6, v0")
        a("s_nop 1")
        a("v_readfirstlane_b32 s44, v1")
        a("s_nop 3")
        stamp_out(a, 10, 6, 44, 0x100000)
    dbg_end(a, 1)
    a("K1_END:")
    a("s_endpgm")

DEN, NUM, ZERO, HIST, FLAG, START, AP, USTG, REC = 0, 25344, 50688, 50944, 51456, 51712, 52224, 80896, 95232
K2_LDS = 163072
ZEND = 51472
CAPT = 2112
KMAX = 9

def gen_k2(a):
    a("k2_kernel:")
    a("s_cmp_ge_u32 s2, 256")
    a("s_cbranch_scc1 K2_END")
    stamp(a, 0)
    dbg_start(a)
    a("s_load_dwordx2 s[4:5], s[0:1], 0")
    a("s_load_dwordx2 s[6:7], s[0:1], 32")
    a("s_load_dwordx4 s[40:43], s[0:1], 48")
    a("s_load_dwordx2 s[44:45], s[0:1], 72")
    a("s_load_dwordx2 s[46:47], s[0:1], 88")
    sWV, sSL, sBK = 36, 37, 38
    vl = 1; vbase = 2; vrem = 3; XF = 4
    vt16 = 8
    t0, t1 = 9, 10
    a(f"v_and_b32 v{vl}, 63, v0")
    a(f"v_lshrrev_b32 v{t0}, 6, v0")
    a(f"s_bfe_u32 s{sSL}, s2, 0x10002")
    a(f"v_readfirstlane_b32 s{sWV}, v{t0}")
    a("s_lshr_b32 s3, s2, 3")
    a(f"s_and_b32 s{sBK}, s2, 3")
    a(f"s_lshl_b32 s{sBK}, s{sBK}, 5")
    a(f"s_or_b32 s{sBK}, s{sBK}, s3")
    a(f"v_and_b32 v{vbase}, -4, v0")
    a(f"v_lshlrev_b32 v{vt16}, 4, v0")
    vW, vX, vA, vB = 11, 12, 13, 14
    gemm_lane_addrs(a, vl, vW, vX, vA, vB, t0, t1)
    a(f"s_lshl_b32 s48, s{sBK}, 10")
    a(f"s_add_u32 s48, s48, {WS_OFF}")
    a(f"s_mul_i32 s49, s{sSL}, {TS}")
    a(f"s_mul_i32 s50, s{sBK}, {NPB*256}")
    a(f"s_lshl_b32 s51, s{sSL}, 7")
    a(f"s_add_u32 s52, s50, s51")
    a(f"s_lshr_b32 s53, s{sWV}, 1")
    a(f"s_and_b32 s54, s{sWV}, 1")
    a("s_waitcnt lgkmcnt(0)")
    srd(a, 32, 46, NCH * 4, add="s48")
    a(f"buffer_load_dword v{vrem}, v{vbase}, s[32:35], 0 offen")
    srd(a, 8, 4, N * 256)
    a("s_cmp_eq_u32 s54, 0")
    a("s_cselect_b32 s6, s6, s42")
    a("s_cselect_b32 s7, s7, s43")
    srd(a, 12, 6, 32768)
    WL = REC; XL = REC + 32768
    a("s_lshl_b32 s55, s53, 12")
    a("s_add_u32 s56, s55, s51")
    a("s_lshl_b32 s57, s53, 11")
    a("s_lshl_b32 s58, s54, 14")
    a("s_add_u32 s57, s57, s58")
    a(f"s_add_u32 s57, s57, {WL}")
    a("s_mov_b32 m0, s57")
    a(f"v_xor_b32 v{t0}, 64, v{vW}")
    a(f"buffer_load_dwordx4 v{vW}, s[12:15], s56 offen lds")
    a("s_add_u32 s57, s57, 1024")
    a("s_mov_b32 m0, s57")
    a("s_add_u32 s56, s56, 2048")
    a(f"buffer_load_dwordx4 v{t0}, s[12:15], s56 offen lds")
    a("s_lshl_b32 s58, s54, 11")
    a("s_add_u32 s56, s55, s58")
    a(f"s_add_u32 s57, s56, {XL}")
    a("s_add_u32 s56, s56, s50")
    a("s_lshl_b32 s58, s54, 7")
    a(f"v_xor_b32 v{t0}, s58, v{vX}")
    a(f"v_xor_b32 v{t1}, 64, v{t0}")
    a("s_mov_b32 m0, s57")
    a("s_add_u32 s57, s57, 1024")
    a(f"buffer_load_dwordx4 v{t0}, s[8:11], s56 offen lds")
    a("s_mov_b32 m0, s57")
    a("s_add_u32 s56, s56, 1024")
    a(f"buffer_load_dwordx4 v{t1}, s[8:11], s56 offen lds")
    a(f"v_lshrrev_b32 v{t0}, 3, v0")
    a(f"v_and_b32 v{t1}, 7, v0")
    a(f"v_lshlrev_b32 v{t1}, 4, v{t1}")
    vOUT = 15
    a(f"v_lshl_or_b32 v{vOUT}, v{t0}, 8, v{t1}")
    a(f"buffer_load_dwordx4 {vr(XF,4)}, v{vOUT}, s[8:11], s52 offen")
    srd(a, 16, 40, 1024)
    a(f"v_lshlrev_b32 v{t0}, 1, v{vl}")
    WC = 16
    for m in range(4):
        a(f"buffer_load_ushort v{WC+m}, v{t0}, s[16:19], s51 offen offset:{256*m}")
    srd(a, 20, 44, N * 256)
    srd(a, 24, 46, (N + 1) * 256, add="s49", stride=256)
    srd(a, 28, 46, NCH * REC_STRIDE, add=hex(WS_REC))
    Z = 20
    for i in range(4):
        a(f"v_mov_b32 v{Z+i}, 0")
    for i in range(3):
        a(f"ds_write_b128 v{vt16}, {vr(Z,4)} offset:{16384*i}")
    a(f"s_movk_i32 s58, {(ZEND-49152)//16}")
    a("v_cmp_gt_u32 vcc, s58, v0")
    a("s_mov_b64 exec, vcc")
    a(f"ds_write_b128 v{vt16}, {vr(Z,4)} offset:49152")
    a("s_mov_b64 exec, -1")
    a(f"s_add_u32 s57, s55, {XL}")
    a(f"v_add_u32 v{vA}, s57, v{vA}")
    a("s_lshl_b32 s58, s54, 14")
    a(f"s_add_u32 s58, s58, {WL}")
    a(f"v_add_u32 v{vB}, s58, v{vB}")
    aA = [vA, 24, 25, 26]; aB = [vB, 27, 28, 29]
    for st in range(1, 4):
        a(f"v_xor_b32 v{aA[st]}, {64*st}, v{vA}")
    for q in range(1, 4):
        a(f"v_xor_b32 v{aB[q]}, {32*q}, v{vB}")
    a(f"v_and_b32 v{t1}, 3, v0")
    a(f"v_lshlrev_b32 v{vbase}, 13, v{vbase}")
    a(f"v_lshl_add_u32 v{vbase}, v{t1}, 4, v{vbase}")
    a("s_mov_b32 s60, 0")
    a("s_waitcnt vmcnt(9)")
    stamp(a, 1)
    a(f"v_and_b32 v{t0}, 0xffff, v{vrem}")
    a(f"v_lshrrev_b32 v{vrem}, 16, v{vrem}")
    a(f"v_lshl_add_u32 v{vbase}, v{t0}, 4, v{vbase}")
    a(f"v_sub_u32 v{vrem}, v{vrem}, v{t1}")
    R = 32
    RK = 68
    HA = 77
    veff = 30; vone = 31
    a("K2_ROUND:")
    for k in range(KMAX):
        a(f"v_cmpx_lt_i32 vcc, {4*k}, v{vrem}")
        a(f"buffer_load_dwordx4 {vr(R+4*k,4)}, v{vbase}, s[28:31], 0 offen offset:{64*k}")
    a("s_mov_b64 exec, -1")
    a(f"s_waitcnt vmcnt({KMAX}) lgkmcnt(0)")
    a("s_barrier")
    stamp(a, 2)
    if STAMP: a("s_waitcnt lgkmcnt(0)")
    a("s_cmp_lg_u32 s60, 0")
    a("s_cbranch_scc1 K2_NOGEMM")
    a(f"s_cmp_ge_u32 s{sWV}, 14")
    a("s_cbranch_scc1 K2_GEMMDONE")
    XA = 86
    WB = 102
    ACC = 68
    for st in range(4):
        a(f"ds_read_b128 {vr(XA+4*st,4)}, v{aA[st]}")
    def wrd(st, q):
        for u in range(2):
            a(f"ds_read_b64_tr_b16 {vr(WB+4*q+2*u,2)}, v{aB[q]} offset:{st*4096+u*512}")
    for q in range(4):
        wrd(0, q)
    for st in range(4):
        for q in range(4):
            a(f"s_waitcnt lgkmcnt({6 if st < 3 else 6-2*q})")
            d = ACC + 4 * q
            c = "0" if st == 0 else vr(d, 4)
            a(f"v_mfma_f32_16x16x32_bf16 {vr(d,4)}, {vr(XA+4*st,4)}, {vr(WB+4*q,4)}, {c}")
            if st < 3:
                a("s_nop 1")
                wrd(st + 1, q)
    a(f"v_lshrrev_b32 v{t0}, 4, v{vl}")
    a(f"v_and_b32 v{t1}, 15, v{vl}")
    a("s_cmp_eq_u32 s54, 0")
    a("s_cbranch_scc0 K2_GEMMU")
    a(f"v_lshlrev_b32 v{t1}, 4, v{t1}")
    a(f"v_lshl_or_b32 v{t0}, v{t0}, 10, v{t1}")
    a(f"v_add_u32 v{t0}, s55, v{t0}")
    a(f"s_mov_b32 s58, {f32(-LOG2E)}")
    a(f"v_mov_b32 v{t1}, {f32(-float(SHIFT))}")
    a("s_nop 1")
    for r in range(4):
        for q in range(4):
            a(f"v_fma_f32 v{XA+4*r+q}, v{ACC+4*q+r}, s58, v{t1}")
        a(f"ds_write_b128 v{t0}, {vr(XA+4*r,4)} offset:{AP+256*r}")
    a("s_branch K2_GEMMDONE")
    a("K2_GEMMU:")
    a(f"v_lshlrev_b32 v{t1}, 1, v{t1}")
    a(f"v_lshl_or_b32 v{t0}, v{t0}, 9, v{t1}")
    a("s_lshr_b32 s58, s55, 1")
    a(f"s_add_u32 s58, s58, {USTG}")
    a(f"v_add_u32 v{t0}, s58, v{t0}")
    a("s_nop 2")
    for q in range(4):
        for r2 in range(2):
            o = XA + 2 * q + r2
            a(f"v_cvt_pk_bf16_f32 v{o}, v{ACC+4*q+2*r2}, v{ACC+4*q+2*r2+1}")
            a(f"ds_write_b16 v{t0}, v{o} offset:{128*(2*r2)+32*q}")
            a(f"ds_write_b16_d16_hi v{t0}, v{o} offset:{128*(2*r2+1)+32*q}")
    a("K2_GEMMDONE:")
    a(f"s_mov_b32 s58, {f32(-LOG2E)}")
    for m in range(4):
        a(f"v_lshlrev_b32 v{WC+m}, 16, v{WC+m}")
        a(f"v_mul_f32 v{WC+m}, s58, v{WC+m}")
    a(f"v_cvt_pk_bf16_f32 v{WC}, v{WC}, v{WC+1}")
    a(f"v_cvt_pk_bf16_f32 v{WC+1}, v{WC+2}, v{WC+3}")
    a("K2_NOGEMM:")
    stamp(a, 3)
    a(f"s_mov_b32 s61, {4*KMAX}")
    a(f"v_mov_b32 v{vone}, 1")
    a("K2_RANK:")
    a("s_sub_u32 s58, s61, 3")
    a(f"v_min_i32 v{veff}, s58, v{vrem}")
    a(f"v_cmpx_lt_i32 vcc, s61, v{vrem}")
    a(f"v_mov_b32 v{t0}, {FLAG}")
    a(f"ds_write_b32 v{t0}, v{vone}")
    a("s_mov_b64 exec, -1")
    for k in range(KMAX):
        a(f"v_cmpx_lt_i32 vcc, {4*k}, v{veff}")
        a(f"s_waitcnt vmcnt({KMAX-1-k})")
        a(f"v_lshrrev_b32 v{HA+k}, 6, v{R+4*k+3}")
        a(f"ds_add_rtn_u32 v{RK+k}, v{HA+k}, v{vone} offset:{HIST}")
    a("s_mov_b64 exec, -1")
    a(f"v_lshlrev_b32 v{t0}, 3, v{vl}")
    a(f"v_mov_b32 v{t1}, {FLAG}")
    a("s_waitcnt lgkmcnt(0)")
    a("s_barrier")
    S0 = 86
    stamp(a, 4)
    if STAMP: a("s_waitcnt lgkmcnt(0)")
    a(f"ds_read_b64 {vr(S0,2)}, v{t0} offset:{HIST}")
    a(f"ds_read_b32 v{S0+2}, v{t1}")
    a("s_waitcnt lgkmcnt(1)")
    a(f"v_add_u32 v{S0+4}, 1, v{S0}")
    a(f"v_add_u32 v{S0+5}, 1, v{S0+1}")
    a(f"v_lshrrev_b32 v{S0+4}, 1, v{S0+4}")
    a(f"v_lshrrev_b32 v{S0+5}, 1, v{S0+5}")
    a(f"v_add_u32 v{S0+6}, v{S0+4}, v{S0+5}")
    a(f"v_mov_b32 v{S0+7}, v{S0+6}")
    wave_scan(a, S0 + 7)
    a(f"v_sub_u32 v{S0+8}, v{S0+7}, v{S0+6}")
    a(f"v_add_u32 v{S0+9}, v{S0+8}, v{S0+4}")
    a(f"v_readlane_b32 s62, v{S0+7}, 63")
    a("s_waitcnt lgkmcnt(0)")
    a(f"v_readfirstlane_b32 s63, v{S0+2}")
    a(f"s_cmp_le_u32 s62, {CAPT}")
    a("s_cbranch_scc1 K2_FITS")
    a("s_cmp_eq_u32 s61, 16")
    a("s_cbranch_scc1 K2_END")
    a("s_barrier")
    a("s_movk_i32 s58, 33")
    a("v_cmp_gt_u32 vcc, s58, v0")
    a("s_mov_b64 exec, vcc")
    for i in range(4):
        a(f"v_mov_b32 v{Z+i}, 0")
    a(f"ds_write_b128 v{vt16}, {vr(Z,4)} offset:{HIST}")
    a("s_mov_b64 exec, -1")
    a("s_mov_b32 s61, 16")
    a("s_waitcnt lgkmcnt(0)")
    a("s_barrier")
    a("s_branch K2_RANK")
    a("K2_FITS:")
    a(f"s_mov_b32 s58, {REC}")
    a(f"v_lshl_add_u32 v{S0+8}, v{S0+8}, 5, s58")
    a(f"v_lshl_add_u32 v{S0+9}, v{S0+9}, 5, s58")
    a(f"ds_write_b64 v{t0}, {vr(S0+8,2)} offset:{START}")
    a("s_add_u32 s64, s62, 63")
    a("s_lshr_b32 s64, s64, 6")
    a("s_max_u32 s64, s64, 16")
    for k in range(KMAX):
        a(f"v_cmpx_lt_i32 vcc, {4*k}, v{veff}")
        a(f"ds_read_b32 v{HA+k}, v{HA+k} offset:{START}")
    a("s_mov_b64 exec, -1")
    D0 = 100
    a(f"v_mov_b32 v{D0}, 0")
    a(f"v_mov_b32 v{D0+1}, 0")
    a(f"v_mov_b32 v{D0+2}, {N}")
    a(f"v_mov_b32 v{D0+3}, {NPB*256}")
    a("s_lshl_b32 s58, s64, 6")
    a("s_add_u32 s58, s58, 4")
    a("s_sub_u32 s58, s58, s62")
    a("s_lshl_b32 s58, s58, 1")
    a("s_lshl_b32 s59, s62, 5")
    a(f"s_add_u32 s59, s59, {REC}")
    a(f"v_add_u32 v{D0+4}, s59, v{vt16}")
    a(f"v_sub_u32 v{D0+5}, s58, v0")
    for i in range(3):
        a(f"v_cmpx_lt_i32 vcc, 0, v{D0+5}")
        a("s_cbranch_execz K2_FILLED")
        a(f"ds_write_b128 v{D0+4}, {vr(D0,4)} offset:{16384*i}")
        a(f"v_subrev_u32 v{D0+5}, 0x400, v{D0+5}")
    a("K2_FILLED:")
    a("s_mov_b64 exec, -1")
    a(f"s_cmp_lt_u32 s{sWV}, 15")
    a("s_cbranch_scc1 K2_NODUMMY")
    for h in range(2):
        a(f"v_lshlrev_b32 v{D0+3}, 9, v{vl}")
        if h:
            a(f"v_add_u32 v{D0+3}, 0x100, v{D0+3}")
        a(f"v_lshl_add_u32 v{D0+4}, v{S0+h}, 4, v{S0+8+h}")
        a(f"v_and_b32 v{D0+5}, 1, v{S0+h}")
        a(f"v_cmpx_eq_u32 vcc, 1, v{D0+5}")
        a(f"ds_write_b128 v{D0+4}, {vr(D0,4)}")
        a("s_mov_b64 exec, -1")
        a("s_nop 0")
    a("K2_NODUMMY:")
    a("s_waitcnt lgkmcnt(0)")
    for k in range(KMAX):
        a(f"v_cmpx_lt_i32 vcc, {4*k}, v{veff}")
        a(f"v_lshl_add_u32 v{HA+k}, v{RK+k}, 4, v{HA+k}")
        a(f"ds_write_b128 v{HA+k}, {vr(R+4*k,4)}")
    a("s_mov_b64 exec, -1")
    G = [24, 36]
    T = [48, 56]
    H = [64, 72]
    AOP = 80
    APR = 88
    IDX = 92
    NO = 96
    AAD = 97
    P_, D_, N_ = 102, 106, 110
    ACCD, ACCN = 114, 118
    ID = 122
    vrs, vra, vinc, v12c, vF, vZ = 124, 125, 126, 127, 9, 10
    vTL = 101
    a(f"v_and_b32 v{t0}, 15, v{vl}")
    a(f"v_lshlrev_b32 v{IDX+1}, 4, v{t0}")
    a(f"v_mov_b32 v{IDX+3}, v{IDX+1}")
    a(f"v_mul_u32_u24 v{v12c}, 12, v{t0}")
    a(f"v_and_b32 v{t0}, 1, v{vl}")
    a(f"v_lshlrev_b32 v{t0}, 4, v{t0}")
    a("s_movk_i32 s58, 0x3f80")
    a(f"v_lshlrev_b32 v{t0}, v{t0}, s58")
    a(f"v_and_b32 v{t1}, 2, v{vl}")
    a(f"v_cmp_eq_u32 vcc, 0, v{t1}")
    a(f"v_lshrrev_b32 v{vW}, 4, v{vl}")
    a(f"v_bfe_u32 v{vX}, v{vl}, 2, 2")
    a(f"v_cndmask_b32 v{ID}, 0, v{t0}, vcc")
    a(f"v_cndmask_b32 v{ID+1}, v{t0}, 0, vcc")
    a(f"v_cmp_eq_u32 vcc, v{vW}, v{vX}")
    a(f"s_lshl_b32 s58, s64, 5")
    a(f"s_lshl_b32 s59, s{sWV}, 2")
    a(f"v_cndmask_b32 v{AOP+2}, 0, v{ID}, vcc")
    a(f"v_cndmask_b32 v{AOP+3}, 0, v{ID+1}, vcc")
    a(f"v_mov_b32 v{AOP+6}, v{AOP+2}")
    a(f"v_mov_b32 v{AOP+7}, v{AOP+3}")
    a("s_mul_i32 s59, s59, s58")
    a(f"s_add_u32 s59, s59, {REC}")
    a(f"v_mov_b32 v{t1}, s59")
    a(f"v_mad_u32_u24 v{vrs}, v{vW}, s58, v{t1}")
    a(f"v_mad_u32_u24 v{vra}, v{vX}, s58, v{t1}")
    a(f"v_lshrrev_b32 v{vTL}, 2, v{IDX+1}")
    a(f"v_add_u32 v{vTL}, v{vTL}, v{vrs}")
    a(f"v_and_b32 v{t0}, 3, v{vl}")
    a(f"v_cmp_eq_u32 vcc, v{vW}, v{t0}")
    a(f"v_mov_b32 v{vZ}, {ZERO}")
    a(f"v_mov_b32 v{t0}, 0x80")
    a(f"v_cndmask_b32 v{vra}, v{vZ}, v{vra}, vcc")
    a(f"v_cndmask_b32 v{vinc}, 0, v{t0}, vcc")
    for i in range(8):
        a(f"v_mov_b32 v{ACCD+i}, 0")
    a(f"s_mov_b32 s66, {f32(2.0**-SHIFT)}")
    a("s_mov_b32 s67, s66")
    a("s_waitcnt lgkmcnt(0)")
    for g in G:
        for o in (0, 6):
            a(f"v_mov_b32 v{g+o}, v{WC}")
            a(f"v_mov_b32 v{g+o+1}, v{WC+1}")
    a("s_barrier")
    stamp(a, 5)
    if STAMP: a("s_waitcnt lgkmcnt(0)")

    def gload(st):
        g = G[st & 1]
        if OPT.get("nogather"):
            return
        a(f"buffer_load_dwordx4 {vr(g+2,4)}, {vr(IDX,2)}, s[24:27], 0 idxen offen")
        a(f"buffer_load_dwordx4 {vr(g+8,4)}, {vr(IDX+2,2)}, s[24:27], 0 idxen offen")
    def rd_idx(p):
        a(f"ds_read_b32 v{IDX}, v{vrs} offset:{32*p+8}")
        a(f"ds_read_b32 v{IDX+2}, v{vrs} offset:{32*p+24}")
    def rd_no(p, dst=NO):
        a(f"ds_read_b32 v{dst}, v{vrs} offset:{32*p+12}")
    def rd_a(p, aad):
        a(f"ds_read_b128 {vr(APR,4)}, v{aad} offset:{AP}")
        a(f"ds_read_b64 {vr(AOP,2)}, v{vra} offset:{32*p}")
        a(f"ds_read_b64 {vr(AOP+4,2)}, v{vra} offset:{32*p+16}")
    def mf(st):
        g, t, h = G[st & 1], T[st & 1], H[st & 1]
        return [f"v_mfma_f32_16x16x32_bf16 {vr(t,4)}, {vr(AOP,4)}, {vr(g,4)}, {vr(APR,4)}",
                f"v_mfma_f32_16x16x32_bf16 {vr(t+4,4)}, {vr(AOP+4,4)}, {vr(g+6,4)}, {vr(APR,4)}",
                f"v_mfma_f32_4x4x4_16b_bf16 {vr(h,4)}, {vr(ID,2)}, {vr(g+4,2)}, 0",
                f"v_mfma_f32_4x4x4_16b_bf16 {vr(h+4,4)}, {vr(ID,2)}, {vr(g+10,2)}, 0"]
    MK = [68, 70]
    rd_idx(0)
    rd_no(0, AAD)
    rd_no(1, AAD + 1)
    a("s_waitcnt lgkmcnt(2)")
    gload(0)
    rd_idx(1)
    a("s_waitcnt lgkmcnt(2)")
    a(f"v_add_u32 v{AAD}, v{AAD}, v{IDX+1}")
    a(f"v_add_u32 v{AAD+1}, v{AAD+1}, v{IDX+1}")
    a("s_waitcnt lgkmcnt(0)")
    gload(1)
    rd_a(0, AAD)
    rd_idx(2)
    a(f"v_cmp_ne_u32 s[{MK[0]}:{MK[0]+1}], v{AAD}, v{AAD+1}")
    a("s_waitcnt vmcnt(2) lgkmcnt(0)")
    for m in mf(0):
        a(m)
    gload(2)
    a("s_nop 1")
    rd_a(1, AAD + 1)
    rd_idx(3)
    rd_no(2)
    a("s_mov_b32 s65, s64")
    stamp(a, 6)
    if STAMP: a("s_waitcnt lgkmcnt(0)")
    a(".p2align 5")
    a("K2_LOOP:")
    def pk(op, d, x, y, z=None):
        for i in (0, 2):
            if z is None:
                a(f"v_pk_{op}_f32 {vr(d+i,2)}, {vr(x+i,2)}, {vr(y+i,2)}")
            else:
                a(f"v_pk_{op}_f32 {vr(d+i,2)}, {vr(x+i,2)}, {vr(y+i,2)}, {vr(z+i,2)}")
    def flush(j):
        a(f"v_sub_u32 v{vF}, v{AAD+j}, v{v12c}")
        op = "ds_write_b32"
        for q in range(4):
            a(f"{op} v{vF}, v{ACCD+q} offset:{DEN+64*q}")
        for q in range(4):
            a(f"{op} v{vF}, v{ACCN+q} offset:{NUM+64*q}")
    for j in range(4):
        t, h = T[j & 1], H[j & 1]
        e = [f"v_exp_f32_e64 v{t+i}, v{t+i} clamp" for i in range(8)]
        m = mf(j + 1)
        a("s_waitcnt vmcnt(2) lgkmcnt(3)")
        for x in (e[0], m[0], e[1], m[1], e[2], m[2], e[3], m[3], e[4]):
            a(x)
        a("s_cmp_gt_u32 s65, 3")
        a("s_waitcnt lgkmcnt(0)")
        a(f"s_cbranch_scc0 K2_SKIP{j}")
        gload(j + 1)
        a(f"K2_BACK{j}:")
        a(e[5])
        a(f"v_add_u32 v{AAD+(j+2)%4}, v{NO}, v{IDX+1}")
        a(e[6])
        rd_a(j + 2, AAD + (j + 2) % 4)
        rd_idx(j + 4)
        rd_no(j + 3)
        a(e[7])
        mk = MK[(j + 1) & 1]
        a(f"v_cmp_ne_u32 s[{mk}:{mk+1}], v{AAD+(j+1)%4}, v{AAD+(j+2)%4}")
        for i in range(4):
            a(f"v_pk_add_f32 {vr(t+2*i,2)}, {vr(t+2*i,2)}, s[66:67]")
        pk("mul", P_, t, t + 4)
        pk("add", D_, t, t + 4)
        pk("mul", N_, h, t + 4)
        for i in range(4):
            a(f"v_rcp_f32 v{P_+i}, v{P_+i}")
        pk("fma", N_, h + 4, t, N_)
        if j == 3:
            a(f"v_add_u32 v{vrs}, 0x80, v{vrs}")
            a(f"v_add_u32 v{vra}, v{vinc}, v{vra}")
        pk("fma", ACCD, D_, P_, ACCD)
        pk("fma", ACCN, N_, P_, ACCN)
        a("s_sub_u32 s65, s65, 1")
        a("s_cmp_eq_u32 s65, 0")
        a(f"s_cbranch_scc1 K2_MAINDONE")
        mk = MK[j & 1]
        a(f"s_cmp_lg_u64 s[{mk}:{mk+1}], 0")
        if not OPT.get("noflush"):
            a(f"s_cbranch_scc1 K2_FLUSH{j}")
        if j == 3:
            a("s_branch K2_LOOP")
        else:
            a(f"K2_FBACK{j}:")
    for j in range(4):
        a(f"K2_SKIP{j}:")
        a("s_waitcnt vmcnt(0)")
        a(f"s_branch K2_BACK{j}")
        a(f"K2_FLUSH{j}:")
        mk = MK[j & 1]
        a(f"s_mov_b64 exec, s[{mk}:{mk+1}]")
        flush(j)
        a(f"ds_read_b128 {vr(ACCD,4)}, v{vZ}")
        a(f"ds_read_b128 {vr(ACCN,4)}, v{vZ}")
        a("s_mov_b64 exec, -1")
        a("s_branch K2_LOOP" if j == 3 else f"s_branch K2_FBACK{j}")
    a("K2_MAINDONE:")
    stamp(a, 7)
    a("s_waitcnt lgkmcnt(0)")
    for q in range(4):
        a(f"ds_write_b32 v{vTL}, v{ACCD+q} offset:{64*q}")
    for q in range(4):
        a(f"ds_write_b32 v{vTL}, v{ACCN+q} offset:{256+64*q}")
    a(f"v_lshrrev_b32 v{t0}, 3, v0")
    a(f"v_lshlrev_b32 v11, 2, v{t0}")
    a(f"v_add_u32 v11, {START}, v11")
    a(f"ds_read2_b32 v[12:13], v11 offset0:0 offset1:1")
    a("v_cvt_f32_u32 v14, s64")
    a("v_rcp_f32 v14, v14")
    a(f"s_movk_i32 s58, {NPB*8}")
    a("v_cmp_gt_u32 vcc, s58, v0")
    a(f"v_mul_f32 v14, {f32(2.0**20)}, v14")
    a("v_cvt_u32_f32 v14, v14")
    a("v_add_u32 v14, 1, v14")
    a(f"v_and_b32 v{t1}, 7, v0")
    a(f"v_lshlrev_b32 v18, 5, v{t1}")
    a(f"v_lshl_or_b32 v11, v{t0}, 8, v18")
    a(f"v_lshrrev_b32 v19, 1, v11")
    a(f"v_add_u32 v19, {USTG}, v19")
    a("s_lshl_b32 s59, s64, 5")
    a("s_waitcnt lgkmcnt(0)")
    for i in range(2):
        a(f"v_subrev_u32 v{12+i}, {REC}, v{12+i}")
        a(f"v_lshrrev_b32 v{12+i}, 5, v{12+i}")
        a(f"v_mul_u32_u24 v{12+i}, v{12+i}, v14")
        a(f"v_lshrrev_b32 v{12+i}, 20, v{12+i}")
    a("v_sub_u32 v13, v13, v12")
    a("v_mad_u32_u24 v12, v12, s59, v18")
    a(f"v_add_u32 v12, {REC}, v12")
    a("s_waitcnt vmcnt(0) lgkmcnt(0)")
    a("s_barrier")
    stamp(a, 8)
    if STAMP: a("s_waitcnt lgkmcnt(0)")
    a("s_mov_b64 exec, vcc")
    a("s_mov_b64 s[68:69], vcc")
    FD, FN, FU = 24, 32, 40
    TD = 64
    a(f"ds_read_b128 {vr(FD,4)}, v11 offset:{DEN}")
    a(f"ds_read_b128 {vr(FD+4,4)}, v11 offset:{DEN+16}")
    a(f"ds_read_b128 {vr(FN,4)}, v11 offset:{NUM}")
    a(f"ds_read_b128 {vr(FN+4,4)}, v11 offset:{NUM+16}")
    a(f"ds_read_b128 {vr(FU,4)}, v19")
    a("K2_TAILS:")
    a("v_cmpx_lt_i32 vcc, 0, v13")
    a("s_cbranch_execz K2_TAILSDONE")
    a(f"ds_read_b128 {vr(TD,4)}, v12")
    a(f"ds_read_b128 {vr(TD+4,4)}, v12 offset:16")
    a(f"ds_read_b128 {vr(TD+8,4)}, v12 offset:256")
    a(f"ds_read_b128 {vr(TD+12,4)}, v12 offset:272")
    a("v_add_u32 v12, s59, v12")
    a("v_subrev_u32 v13, 1, v13")
    a("s_waitcnt lgkmcnt(0)")
    for i in range(8):
        a(f"v_pk_add_f32 {vr(FD+2*i,2)}, {vr(FD+2*i,2)}, {vr(TD+2*i,2)}")
    a("s_branch K2_TAILS")
    a("K2_TAILSDONE:")
    a("s_mov_b64 exec, s[68:69]")
    a("s_or_b32 s58, s60, s63")
    a("s_cmp_eq_u32 s58, 0")
    a("s_cbranch_scc1 K2_FINAL")
    a("s_lshl_b32 s58, s2, 16")
    a(f"s_add_u32 s58, s58, {WS_SPILL}")
    srd(a, 32, 46, 65536, add="s58")
    a(f"v_lshlrev_b32 v18, 2, v{vt16}")
    a("s_waitcnt lgkmcnt(0)")
    a("s_cmp_eq_u32 s60, 0")
    a("s_cbranch_scc1 K2_NOSPILLIN")
    for i in range(4):
        a(f"buffer_load_dwordx4 {vr(TD+4*i,4)}, v18, s[32:35], 0 offen offset:{16*i} sc1")
    a("s_waitcnt vmcnt(0)")
    for i in range(8):
        a(f"v_pk_add_f32 {vr(FD+2*i,2)}, {vr(FD+2*i,2)}, {vr(TD+2*i,2)}")
    a("K2_NOSPILLIN:")
    a("s_cmp_eq_u32 s63, 0")
    a("s_cbranch_scc1 K2_FINAL")
    for i in range(4):
        a(f"buffer_store_dwordx4 {vr(FD+4*i,4)}, v18, s[32:35], 0 offen offset:{16*i} sc1")
    for i in range(4):
        a(f"v_mov_b32 v{Z+i}, 0")
    for o in (DEN, DEN + 16, NUM, NUM + 16):
        a(f"ds_write_b128 v11, {vr(Z,4)} offset:{o}")
    a("s_mov_b64 exec, -1")
    for i in range(4):
        a(f"v_mov_b32 v{Z+i}, 0")
    a("s_movk_i32 s58, 33")
    a("v_cmp_gt_u32 vcc, s58, v0")
    a("s_mov_b64 exec, vcc")
    a(f"ds_write_b128 v{vt16}, {vr(Z,4)} offset:{HIST}")
    a("s_mov_b64 exec, -1")
    a(f"v_subrev_u32 v{vrem}, s61, v{vrem}")
    a("s_lshl_b32 s58, s61, 4")
    a(f"v_add_u32 v{vbase}, s58, v{vbase}")
    a("s_add_u32 s60, s60, 1")
    a("s_waitcnt vmcnt(0)")
    a("s_cmp_le_u32 s60, 128")
    a("s_cbranch_scc1 K2_ROUND")
    a("s_endpgm")
    a("K2_FINAL:")
    a(f"s_mov_b32 s58, {f32(1e-6 * 2.0**SHIFT)}")
    XU = 48
    for i in range(4):
        a(f"v_lshlrev_b32 v{XU+2*i}, 16, v{XF+i}")
        a(f"v_and_b32 v{XU+2*i+1}, 0xffff0000, v{XF+i}")
    a("s_waitcnt lgkmcnt(0)")
    for i in range(8):
        a(f"v_add_f32 v{FD+i}, s58, v{FD+i}")
    for i in range(8):
        a(f"v_rcp_f32 v{FD+i}, v{FD+i}")
    for i in range(4):
        a(f"v_lshlrev_b32 v{XU+8+2*i}, 16, v{FU+i}")
        a(f"v_and_b32 v{XU+8+2*i+1}, 0xffff0000, v{FU+i}")
    for i in range(8):
        a(f"v_fmac_f32 v{XU+8+i}, v{FN+i}, v{FD+i}")
    for i in range(8):
        a(f"v_max_f32 v{XU+8+i}, 0, v{XU+8+i}")
    for i in range(8):
        a(f"v_add_f32 v{XU+i}, v{XU+i}, v{XU+8+i}")
    for i in range(4):
        a(f"v_cvt_pk_bf16_f32 v{FD+i}, v{XU+2*i}, v{XU+2*i+1}")
    a(f"buffer_store_dwordx4 {vr(FD,4)}, v{vOUT}, s[20:23], s52 offen")
    a("K2_FIN:")
    stamp(a, 9)
    stamp_out(a, 10, 46, sWV, 0)
    dbg_end(a, 2)
    a("K2_END:")
    a("s_endpgm")

HEADER = """; GatedGCN message passing, two launches.
"""

def descriptor(name, vgpr, sgpr):
    return f""".p2align 6
.amdhsa_kernel {name}
  .amdhsa_next_free_vgpr {vgpr}
  .amdhsa_next_free_sgpr {sgpr}
  .amdhsa_accum_offset {(vgpr+3)//4*4}
  .amdhsa_group_segment_fixed_size 0
  .amdhsa_kernarg_size 96
  .amdhsa_user_sgpr_count 2
  .amdhsa_user_sgpr_kernarg_segment_ptr 1
  .amdhsa_system_sgpr_workgroup_id_x 1
  .amdhsa_float_denorm_mode_32 3
.end_amdhsa_kernel
"""

def main():
    out = HEADER
    out += f"; @launch kernel=k1_kernel grid=({NGEMM+NCH},1,1) block=(512,1,1) lds=65536\n"
    out += f"; @launch kernel=k2_kernel grid=(256,1,1) block=(1024,1,1) lds={K2_LDS}\n"
    out += '.amdgcn_target "amdgcn-amd-amdhsa--gfx950"\n.text\n'
    for name, g in (("k1_kernel", gen_k1), ("k2_kernel", gen_k2)):
        a = A()
        g(a)
        out += f".globl {name}\n.p2align 8\n.type {name},@function\n" + a.text()
    out += '.section .rodata,"a"\n'
    out += descriptor("k1_kernel", 100, 102 if (STAMP or DBG) else 64)
    out += descriptor("k2_kernel", 128, 102 if (STAMP or DBG) else 80)
    path = sys.argv[1] if len(sys.argv) > 1 else "standalone__edge_featured_mpnn_gatedgcn__graph.s"
    open(path, "w").write(out)

main()
```

```python
import sys, struct

N = 12500
E = 400000
NPB = 98
NBK = 128
NCH = 250
CHE = 1600
NGEMM = 196
TS = 0x310000
WS_REC = 0x800000
REC_STRIDE = 32768
WS_OFF = 0x1000000
WS_SPILL = 0x4000000
LOG2E = 1.4426950408889634
SHIFT = 40

def f32(x):
    return "0x%08x" % struct.unpack("<I", struct.pack("<f", x))[0]

import os
STAMP = os.environ.get("STAMP") == "1"
OPT = dict(kv.split("=") for kv in os.environ.get("OPT", "").split(",") if kv)
WS_STAMP = 0x2000000
def stamp(a, i):
    if STAMP:
        a(f"s_memtime s[{80+2*i}:{81+2*i}]")
        if i == 0:
            a("s_memrealtime s[100:101]")
def stamp_out(a, n, wsptr, wave_sreg, base):
    if not STAMP:
        return
    a("s_memrealtime s[78:79]")
    a("s_waitcnt vmcnt(0) lgkmcnt(0)")
    a("s_mov_b64 exec, 1")
    srd(a, 72, wsptr, 1 << 20, add=hex(WS_STAMP + base))
    a(f"s_lshl_b32 s76, s2, 4")
    a(f"s_add_u32 s76, s76, s{wave_sreg}")
    a(f"s_lshl_b32 s76, s76, 6")
    a("v_mov_b32 v1, s76")
    for i in range(n):
        a(f"v_mov_b32 v2, s{80+2*i}")
        a(f"buffer_store_dword v2, v1, s[72:75], 0 offen offset:{4*i}")
        a("s_nop 1")
    a("v_mov_b32 v2, s100")
    a(f"buffer_store_dword v2, v1, s[72:75], 0 offen offset:56")
    a("s_nop 1")
    a("v_mov_b32 v2, s78")
    a(f"buffer_store_dword v2, v1, s[72:75], 0 offen offset:60")
    a("s_waitcnt vmcnt(0)")

class A:
    def __init__(self):
        self.l = []
    def __call__(self, s=""):
        for line in s.split("\n"):
            line = line.strip()
            if not line:
                continue
            if line.endswith(":"):
                self.l.append(line)
            else:
                self.l.append("    " + line)
    def text(self):
        return "\n".join(self.l) + "\n"

def vr(b, n):
    return f"v[{b}:{b+n-1}]" if n > 1 else f"v{b}"
def sr(b, n):
    return f"s[{b}:{b+n-1}]" if n > 1 else f"s{b}"

def srd(a, d, ptr, size, add=None, stride=0):
    if add is None:
        a(f"s_mov_b32 s{d}, s{ptr}")
        a(f"s_and_b32 s{d+1}, s{ptr+1}, 0xffff")
    else:
        a(f"s_add_u32 s{d}, s{ptr}, {add}")
        a(f"s_addc_u32 s{d+1}, s{ptr+1}, 0")
        a(f"s_and_b32 s{d+1}, s{d+1}, 0xffff")
    if stride:
        a(f"s_or_b32 s{d+1}, s{d+1}, {hex(stride << 16)}")
    a(f"s_mov_b32 s{d+2}, {size}")
    a(f"s_mov_b32 s{d+3}, 0x00020000")

def wave_scan(a, v):
    for sh in (1, 2, 4, 8):
        a("s_nop 1")
        a(f"v_add_u32_dpp v{v}, v{v}, v{v} row_shr:{sh} row_mask:0xf bank_mask:0xf bound_ctrl:0")
    a("s_nop 1")
    a(f"v_add_u32_dpp v{v}, v{v}, v{v} row_bcast:15 row_mask:0xa bank_mask:0xf")
    a("s_nop 1")
    a(f"v_add_u32_dpp v{v}, v{v}, v{v} row_bcast:31 row_mask:0xc bank_mask:0xf")

def gemm_lane_addrs(a, vl, vW, vX, vA, vB, t0, t1):
    a(f"v_lshrrev_b32 v{t0}, 3, v{vl}")
    a(f"v_and_b32 v{t1}, 2, v{t0}")
    a(f"v_and_b32 v{vW}, 7, v{vl}")
    a(f"v_xor_b32 v{vW}, v{vW}, v{t1}")
    a(f"v_lshlrev_b32 v{vW}, 4, v{vW}")
    a(f"v_lshl_or_b32 v{vW}, v{t0}, 8, v{vW}")
    a(f"v_lshrrev_b32 v{t0}, 4, v{vl}")
    a(f"v_and_b32 v{t1}, 15, v{vl}")
    a(f"v_xor_b32 v{vX}, v{t1}, v{t0}")
    a(f"v_lshlrev_b32 v{vX}, 4, v{vX}")
    a(f"v_lshl_or_b32 v{vA}, v{t1}, 8, v{vX}")
    a(f"v_lshl_or_b32 v{vX}, v{t0}, 8, v{vX}")
    a(f"v_bfe_u32 v{t1}, v{vl}, 2, 2")
    a(f"v_lshl_add_u32 v{vB}, v{t0}, 3, v{t1}")
    a(f"v_lshlrev_b32 v{vB}, 7, v{vB}")
    a(f"v_and_b32 v{t1}, 2, v{t1}")
    a(f"v_and_b32 v{t0}, 1, v{t0}")
    a(f"v_lshl_or_b32 v{t1}, v{t0}, 2, v{t1}")
    a(f"v_bfe_u32 v{t0}, v{vl}, 1, 1")
    a(f"v_xor_b32 v{t0}, v{t0}, v{t1}")
    a(f"v_lshl_or_b32 v{vB}, v{t0}, 4, v{vB}")
    a(f"v_and_b32 v{t0}, 1, v{vl}")
    a(f"v_lshl_or_b32 v{vB}, v{t0}, 3, v{vB}")

def gen_k1(a):
    a("k1_kernel:")
    a(f"s_cmp_ge_u32 s2, {NGEMM + NCH}")
    a("s_cbranch_scc1 K1_END")
    stamp(a, 0)
    a(f"s_cmp_ge_u32 s2, {NGEMM}")
    a("s_cbranch_scc1 K1_PART")
    a("s_load_dwordx2 s[4:5], s[0:1], 0")
    a("s_load_dwordx2 s[6:7], s[0:1], 40")
    a("s_load_dwordx2 s[28:29], s[0:1], 64")
    a("s_load_dwordx2 s[30:31], s[0:1], 88")
    vl, vW, vX, vA, vB, t0, t1 = 1, 2, 3, 4, 5, 6, 7
    a(f"v_and_b32 v{vl}, 63, v0")
    a(f"v_lshrrev_b32 v{t0}, 6, v0")
    a("s_and_b32 s33, s2, 1")
    a(f"v_readfirstlane_b32 s32, v{t0}")
    a("s_lshr_b32 s34, s2, 1")
    gemm_lane_addrs(a, vl, vW, vX, vA, vB, t0, t1)
    a(f"v_xor_b32 v8, 64, v{vW}")
    a(f"v_xor_b32 v9, 64, v{vX}")
    a(f"v_xor_b32 v10, 0x80, v{vX}")
    a(f"v_xor_b32 v11, 0xc0, v{vX}")
    a("s_lshl_b32 s35, s32, 12")
    a("s_lshl_b32 s36, s33, 7")
    a("s_add_u32 s36, s36, s35")
    a("s_add_u32 s37, s36, 2048")
    a("s_lshl_b32 s38, s34, 15")
    a("s_add_u32 s38, s38, s35")
    a("s_lshl_b32 s39, s32, 11")
    a("s_waitcnt lgkmcnt(0)")
    stamp(a, 1)
    srd(a, 8, 4, N * 256)
    srd(a, 12, 6, 32768)
    srd(a, 16, 28, 32768)
    a("s_mul_i32 s40, s33, %d" % TS)
    srd(a, 20, 30, N * 256, add="s40")
    a("s_mov_b32 m0, s39")
    a("s_add_u32 s41, s39, 1024")
    a(f"buffer_load_dwordx4 v{vW}, s[12:15], s36 offen lds")
    a("s_mov_b32 m0, s41")
    a("s_add_u32 s41, s39, 16384")
    a("buffer_load_dwordx4 v8, s[12:15], s37 offen lds")
    a("s_mov_b32 m0, s41")
    a("s_add_u32 s41, s39, 17408")
    a(f"buffer_load_dwordx4 v{vW}, s[16:19], s36 offen lds")
    a("s_mov_b32 m0, s41")
    a("s_add_u32 s41, s35, 32768")
    a("buffer_load_dwordx4 v8, s[16:19], s37 offen lds")
    xr = [vX, 9, 10, 11]
    for i in range(4):
        a("s_mov_b32 m0, s41")
        a("s_add_u32 s41, s41, 1024")
        a(f"buffer_load_dwordx4 v{xr[i]}, s[8:11], s38 offen lds")
        if i < 3:
            a("s_add_u32 s38, s38, 1024")
    a("s_sub_u32 s38, s38, 3072")
    a("s_add_u32 s41, s35, 32768")
    a(f"v_add_u32 v{vA}, s41, v{vA}")
    for st in range(1, 4):
        a(f"v_xor_b32 v{11+st}, {64*st}, v{vA}")
    for q in range(1, 4):
        a(f"v_xor_b32 v{14+q}, {32*q}, v{vB}")
    aA = [vA, 12, 13, 14]
    aB = [vB, 15, 16, 17]
    a(f"v_lshrrev_b32 v{t0}, 4, v{vl}")
    a(f"v_and_b32 v{t1}, 15, v{vl}")
    a(f"v_lshlrev_b32 v{t1}, 4, v{t1}")
    a(f"v_lshl_or_b32 v18, v{t0}, 10, v{t1}")
    stamp(a, 2)
    a("s_waitcnt vmcnt(0)")
    stamp(a, 3)
    a("s_barrier")
    stamp(a, 4)
    if STAMP: a("s_waitcnt lgkmcnt(0)")
    XA = 20
    for st in range(4):
        a(f"ds_read_b128 {vr(XA+4*st,4)}, v{aA[st]}")
    WB = 36
    ACC = 68
    seq = [(st, m) for st in range(4) for m in range(2)]
    def wreads_half(n):
        st, m = seq[n]
        base = WB + 16 * (n & 1)
        for q in range(4):
            for u in range(2):
                a(f"ds_read_b64_tr_b16 {vr(base+4*q+2*u,2)}, v{aB[q]} offset:{m*16384+st*4096+u*512}")
    wreads_half(0)
    for n, (st, m) in enumerate(seq):
        if n + 1 < len(seq):
            a("s_waitcnt lgkmcnt(4)")
            wreads_half(n + 1)
            a("s_waitcnt lgkmcnt(8)")
        else:
            a("s_waitcnt lgkmcnt(0)")
        base = WB + 16 * (n & 1)
        for q in range(4):
            d = ACC + 16 * m + 4 * q
            c = "0" if st == 0 else vr(d, 4)
            a(f"v_mfma_f32_16x16x32_bf16 {vr(d,4)}, {vr(XA+4*st,4)}, {vr(base+4*q,4)}, {c}")
    stamp(a, 5)
    a(f"s_mov_b32 s42, {f32(-LOG2E)}")
    a("s_mov_b32 s43, s42")
    a("s_nop 1")
    for i in range(8):
        a(f"v_pk_mul_f32 {vr(ACC+2*i,2)}, {vr(ACC+2*i,2)}, s[42:43]")
    for r in range(4):
        o = 20 + 4 * r
        a(f"v_cvt_pk_bf16_f32 v{o}, v{ACC+r}, v{ACC+4+r}")
        a(f"v_cvt_pk_bf16_f32 v{o+1}, v{ACC+8+r}, v{ACC+12+r}")
        a(f"v_cvt_pk_bf16_f32 v{o+2}, v{ACC+16+r}, v{ACC+20+r}")
        a(f"v_cvt_pk_bf16_f32 v{o+3}, v{ACC+24+r}, v{ACC+28+r}")
        a(f"buffer_store_dwordx4 {vr(o,4)}, v18, s[20:23], s38 offen offset:{256*r}")
    stamp(a, 6)
    a("s_or_b32 s41, s34, s32")
    a("s_cmp_lg_u32 s41, 0")
    a("s_cbranch_scc1 K1_GEND")
    a(f"s_mov_b32 s22, {(N+1)*256}")
    a(f"s_mov_b32 s41, {N*256}")
    a("v_mov_b32 v36, 0x70007000")
    a("v_mov_b32 v37, 0x70007000")
    a("v_mov_b32 v38, 0")
    a("v_mov_b32 v39, 0")
    a("s_mov_b64 exec, 0xffff")
    a(f"buffer_store_dwordx4 v[36:39], v18, s[20:23], s41 offen")
    a("K1_GEND:")
    if STAMP:
        a("s_waitcnt vmcnt(0)")
        stamp(a, 7); stamp(a, 8); stamp(a, 9)
        stamp_out(a, 10, 30, 32, 0x100000)
    a("s_endpgm")
    a("K1_PART:")
    HIST, START, RECL = 0, 512, 1024
    a("s_load_dwordx2 s[4:5], s[0:1], 8")
    a("s_load_dwordx4 s[28:31], s[0:1], 16")
    a("s_load_dwordx2 s[6:7], s[0:1], 88")
    a(f"s_sub_u32 s32, s2, {NGEMM}")
    a(f"s_mul_i32 s33, s32, {CHE*4}")
    a("s_lshl_b32 s34, s33, 1")
    a("v_lshlrev_b32 v1, 4, v0")
    a("v_lshlrev_b32 v2, 5, v0")
    a("v_lshlrev_b32 v3, 2, v0")
    a("v_mov_b32 v40, 0")
    a("v_mov_b32 v41, 1")
    a(f"v_cmp_gt_u32 s[36:37], 64, v0")
    a(f"s_movk_i32 s35, {CHE//4}")
    a(f"v_cmp_gt_u32 s[38:39], s35, v0")
    a("s_movk_i32 s35, 128")
    a(f"v_cmp_gt_u32 vcc, s35, v0")
    a("s_mov_b64 exec, vcc")
    a(f"ds_write_b32 v3, v40 offset:{HIST}")
    a("s_mov_b64 exec, s[38:39]")
    a("s_waitcnt lgkmcnt(0)")
    stamp(a, 1)
    srd(a, 8, 30, E * 4)
    srd(a, 12, 28, E * 4)
    srd(a, 16, 4, E * 8)
    a("buffer_load_dwordx4 v[4:7], v1, s[8:11], s33 offen")
    a("buffer_load_dwordx4 v[8:11], v1, s[12:15], s33 offen")
    a("buffer_load_dwordx4 v[12:15], v2, s[16:19], s34 offen")
    a("buffer_load_dwordx4 v[16:19], v2, s[16:19], s34 offen offset:16")
    a("s_lshl_b32 s35, s32, 15")
    a(f"s_add_u32 s35, s35, {WS_REC}")
    srd(a, 20, 6, 0, add="s35")
    srd(a, 24, 6, NBK * 1024, add=hex(WS_OFF))
    a("s_movk_i32 s35, -98")
    a("s_barrier")
    a("s_waitcnt vmcnt(3)")
    stamp(a, 2)
    for j in range(4):
        a(f"v_mul_u32_u24 v{20+j}, 10700, v{4+j}")
        a(f"v_lshrrev_b32 v{20+j}, 20, v{20+j}")
        a(f"v_lshlrev_b32 v{24+j}, 2, v{20+j}")
        a(f"ds_add_rtn_u32 v{28+j}, v{24+j}, v41 offset:{HIST}")
    for j in range(4):
        a(f"v_mad_i32_i24 v{20+j}, v{20+j}, s35, v{4+j}")
        a(f"v_lshlrev_b32 v{33+2*j}, 8, v{20+j}")
    a("s_waitcnt vmcnt(2)")
    for j in range(4):
        a(f"v_mov_b32 v{32+2*j}, v{8+j}")
    a("s_mov_b64 exec, -1")
    a("v_and_b32 v42, 63, v0")
    a("v_lshlrev_b32 v42, 3, v42")
    a("s_waitcnt lgkmcnt(0)")
    a("s_barrier")
    stamp(a, 3)
    a(f"ds_read_b64 v[44:45], v42 offset:{HIST}")
    a("s_waitcnt lgkmcnt(0)")
    a("v_add_u32 v46, 3, v44")
    a("v_add_u32 v47, 3, v45")
    a("v_and_b32 v46, -4, v46")
    a("v_and_b32 v47, -4, v47")
    a("v_add_u32 v48, v46, v47")
    a("v_mov_b32 v49, v48")
    wave_scan(a, 49)
    a("v_sub_u32 v50, v49, v48")
    a("v_add_u32 v51, v50, v46")
    a("v_readlane_b32 s40, v49, 63")
    a(f"ds_write_b64 v42, v[50:51] offset:{START}")
    a("s_mov_b64 exec, s[38:39]")
    for j in range(4):
        a(f"ds_read_b32 v{20+j}, v{24+j} offset:{START}")
    a("s_lshl_b32 s22, s40, 4")
    if STAMP:
        a("s_waitcnt lgkmcnt(0)"); stamp(a, 4); a("s_waitcnt vmcnt(0) lgkmcnt(0)"); stamp(a, 5); a("s_waitcnt lgkmcnt(0)")
    a("s_mov_b64 exec, s[36:37]")
    a("v_lshl_or_b32 v52, v44, 16, v50")
    a("v_lshl_or_b32 v53, v45, 16, v51")
    a("v_lshlrev_b32 v54, 8, v42")
    a("s_lshl_b32 s41, s32, 2")
    a("buffer_store_dword v52, v54, s[24:27], s41 offen")
    a("buffer_store_dword v53, v54, s[24:27], s41 offen offset:1024")
    a("s_mov_b64 exec, s[38:39]")
    for j in range(4):
        a(f"s_waitcnt lgkmcnt({3-j})" if j else "s_waitcnt vmcnt(2) lgkmcnt(3)")
        a(f"v_add_lshl_u32 v{20+j}, v{20+j}, v{28+j}, 4")
    for j in range(4):
        a(f"ds_write2_b64 v{20+j}, {vr(12+2*j,2)}, {vr(32+2*j,2)} offset0:{RECL//8} offset1:{RECL//8+1}")
    a("s_mov_b64 exec, -1")
    a("s_waitcnt lgkmcnt(0)")
    a("s_barrier")
    stamp(a, 6)
    if STAMP: a("s_waitcnt lgkmcnt(0)")
    for i in range(4):
        a(f"ds_read_b128 {vr(4+4*i,4)}, v1 offset:{RECL+8192*i}" if i < 3 else
          f"ds_read_b128 {vr(4+4*i,4)}, v1 offset:{RECL+8192*i}")
    a("s_movk_i32 s41, 0x2000")
    a("s_movk_i32 s42, 0x4000")
    a("s_movk_i32 s43, 0x6000")
    so = ["0", "s41", "s42", "s43"]
    for i in range(4):
        a(f"s_waitcnt lgkmcnt({3-i})")
        a(f"buffer_store_dwordx4 {vr(4+4*i,4)}, v1, s[20:23], {so[i]} offen")
    if STAMP:
        stamp(a, 7)
        a("s_waitcnt vmcnt(0)")
        stamp(a, 8); stamp(a, 9)
        a("v_lshrrev_b32 v1, 6, v0")
        a("s_nop 1")
        a("v_readfirstlane_b32 s44, v1")
        a("s_nop 3")
        stamp_out(a, 10, 6, 44, 0x100000)
    a("K1_END:")
    a("s_endpgm")

DEN, NUM, ZERO, HIST, FLAG, START, AP, USTG, REC = 0, 25344, 50688, 50944, 51456, 51712, 52224, 80896, 95232
K2_LDS = 163072
ZEND = 51472
CAPT = 2112
KMAX = 9

def gen_k2(a):
    a("k2_kernel:")
    a("s_cmp_ge_u32 s2, 256")
    a("s_cbranch_scc1 K2_END")
    stamp(a, 0)
    a("s_load_dwordx2 s[4:5], s[0:1], 0")
    a("s_load_dwordx2 s[6:7], s[0:1], 32")
    a("s_load_dwordx4 s[40:43], s[0:1], 48")
    a("s_load_dwordx2 s[44:45], s[0:1], 72")
    a("s_load_dwordx2 s[46:47], s[0:1], 88")
    sWV, sSL, sBK = 36, 37, 38
    vl = 1; vbase = 2; vrem = 3; XF = 4
    vt16 = 8
    t0, t1 = 9, 10
    a(f"v_and_b32 v{vl}, 63, v0")
    a(f"v_lshrrev_b32 v{t0}, 6, v0")
    a(f"s_bfe_u32 s{sSL}, s2, 0x10002")
    a(f"v_readfirstlane_b32 s{sWV}, v{t0}")
    a("s_lshr_b32 s3, s2, 3")
    a(f"s_and_b32 s{sBK}, s2, 3")
    a(f"s_lshl_b32 s{sBK}, s{sBK}, 5")
    a(f"s_or_b32 s{sBK}, s{sBK}, s3")
    a(f"v_and_b32 v{vbase}, -4, v0")
    a(f"v_lshlrev_b32 v{vt16}, 4, v0")
    vW, vX, vA, vB = 11, 12, 13, 14
    gemm_lane_addrs(a, vl, vW, vX, vA, vB, t0, t1)
    a(f"s_lshl_b32 s48, s{sBK}, 10")
    a(f"s_add_u32 s48, s48, {WS_OFF}")
    a(f"s_mul_i32 s49, s{sSL}, {TS}")
    a(f"s_mul_i32 s50, s{sBK}, {NPB*256}")
    a(f"s_lshl_b32 s51, s{sSL}, 7")
    a(f"s_add_u32 s52, s50, s51")
    a(f"s_lshr_b32 s53, s{sWV}, 1")
    a(f"s_and_b32 s54, s{sWV}, 1")
    a("s_waitcnt lgkmcnt(0)")
    srd(a, 32, 46, NCH * 4, add="s48")
    a(f"buffer_load_dword v{vrem}, v{vbase}, s[32:35], 0 offen")
    srd(a, 8, 4, N * 256)
    a("s_cmp_eq_u32 s54, 0")
    a("s_cselect_b32 s6, s6, s42")
    a("s_cselect_b32 s7, s7, s43")
    srd(a, 12, 6, 32768)
    WL = REC; XL = REC + 32768
    a("s_lshl_b32 s55, s53, 12")
    a("s_add_u32 s56, s55, s51")
    a("s_lshl_b32 s57, s53, 11")
    a("s_lshl_b32 s58, s54, 14")
    a("s_add_u32 s57, s57, s58")
    a(f"s_add_u32 s57, s57, {WL}")
    a("s_mov_b32 m0, s57")
    a(f"v_xor_b32 v{t0}, 64, v{vW}")
    a(f"buffer_load_dwordx4 v{vW}, s[12:15], s56 offen lds")
    a("s_add_u32 s57, s57, 1024")
    a("s_mov_b32 m0, s57")
    a("s_add_u32 s56, s56, 2048")
    a(f"buffer_load_dwordx4 v{t0}, s[12:15], s56 offen lds")
    a("s_lshl_b32 s58, s54, 11")
    a("s_add_u32 s56, s55, s58")
    a(f"s_add_u32 s57, s56, {XL}")
    a("s_add_u32 s56, s56, s50")
    a("s_lshl_b32 s58, s54, 7")
    a(f"v_xor_b32 v{t0}, s58, v{vX}")
    a(f"v_xor_b32 v{t1}, 64, v{t0}")
    a("s_mov_b32 m0, s57")
    a("s_add_u32 s57, s57, 1024")
    a(f"buffer_load_dwordx4 v{t0}, s[8:11], s56 offen lds")
    a("s_mov_b32 m0, s57")
    a("s_add_u32 s56, s56, 1024")
    a(f"buffer_load_dwordx4 v{t1}, s[8:11], s56 offen lds")
    a(f"v_lshrrev_b32 v{t0}, 3, v0")
    a(f"v_and_b32 v{t1}, 7, v0")
    a(f"v_lshlrev_b32 v{t1}, 4, v{t1}")
    vOUT = 15
    a(f"v_lshl_or_b32 v{vOUT}, v{t0}, 8, v{t1}")
    a(f"buffer_load_dwordx4 {vr(XF,4)}, v{vOUT}, s[8:11], s52 offen")
    srd(a, 16, 40, 1024)
    a(f"v_lshlrev_b32 v{t0}, 1, v{vl}")
    WC = 16
    for m in range(4):
        a(f"buffer_load_ushort v{WC+m}, v{t0}, s[16:19], s51 offen offset:{256*m}")
    srd(a, 20, 44, N * 256)
    srd(a, 24, 46, (N + 1) * 256, add="s49", stride=256)
    srd(a, 28, 46, NCH * REC_STRIDE, add=hex(WS_REC))
    Z = 20
    for i in range(4):
        a(f"v_mov_b32 v{Z+i}, 0")
    for i in range(3):
        a(f"ds_write_b128 v{vt16}, {vr(Z,4)} offset:{16384*i}")
    a(f"s_movk_i32 s58, {(ZEND-49152)//16}")
    a("v_cmp_gt_u32 vcc, s58, v0")
    a("s_mov_b64 exec, vcc")
    a(f"ds_write_b128 v{vt16}, {vr(Z,4)} offset:49152")
    a("s_mov_b64 exec, -1")
    a(f"s_add_u32 s57, s55, {XL}")
    a(f"v_add_u32 v{vA}, s57, v{vA}")
    a("s_lshl_b32 s58, s54, 14")
    a(f"s_add_u32 s58, s58, {WL}")
    a(f"v_add_u32 v{vB}, s58, v{vB}")
    aA = [vA, 24, 25, 26]; aB = [vB, 27, 28, 29]
    for st in range(1, 4):
        a(f"v_xor_b32 v{aA[st]}, {64*st}, v{vA}")
    for q in range(1, 4):
        a(f"v_xor_b32 v{aB[q]}, {32*q}, v{vB}")
    a(f"v_and_b32 v{t1}, 3, v0")
    a(f"v_lshlrev_b32 v{vbase}, 13, v{vbase}")
    a(f"v_lshl_add_u32 v{vbase}, v{t1}, 4, v{vbase}")
    a("s_mov_b32 s60, 0")
    a("s_waitcnt vmcnt(9)")
    stamp(a, 1)
    a(f"v_and_b32 v{t0}, 0xffff, v{vrem}")
    a(f"v_lshrrev_b32 v{vrem}, 16, v{vrem}")
    a(f"v_lshl_add_u32 v{vbase}, v{t0}, 4, v{vbase}")
    a(f"v_sub_u32 v{vrem}, v{vrem}, v{t1}")
    R = 32
    RK = 68
    HA = 77
    veff = 30; vone = 31
    a("K2_ROUND:")
    for k in range(KMAX):
        a(f"v_cmpx_lt_i32 vcc, {4*k}, v{vrem}")
        a(f"buffer_load_dwordx4 {vr(R+4*k,4)}, v{vbase}, s[28:31], 0 offen offset:{64*k}")
    a("s_mov_b64 exec, -1")
    a(f"s_waitcnt vmcnt({KMAX}) lgkmcnt(0)")
    a("s_barrier")
    stamp(a, 2)
    if STAMP: a("s_waitcnt lgkmcnt(0)")
    a("s_cmp_lg_u32 s60, 0")
    a("s_cbranch_scc1 K2_NOGEMM")
    a(f"s_cmp_ge_u32 s{sWV}, 14")
    a("s_cbranch_scc1 K2_GEMMDONE")
    XA = 86
    WB = 102
    ACC = 68
    for st in range(4):
        a(f"ds_read_b128 {vr(XA+4*st,4)}, v{aA[st]}")
    def wrd(st, q):
        for u in range(2):
            a(f"ds_read_b64_tr_b16 {vr(WB+4*q+2*u,2)}, v{aB[q]} offset:{st*4096+u*512}")
    for q in range(4):
        wrd(0, q)
    for st in range(4):
        for q in range(4):
            a(f"s_waitcnt lgkmcnt({6 if st < 3 else 6-2*q})")
            d = ACC + 4 * q
            c = "0" if st == 0 else vr(d, 4)
            a(f"v_mfma_f32_16x16x32_bf16 {vr(d,4)}, {vr(XA+4*st,4)}, {vr(WB+4*q,4)}, {c}")
            if st < 3:
                a("s_nop 1")
                wrd(st + 1, q)
    a(f"v_lshrrev_b32 v{t0}, 4, v{vl}")
    a(f"v_and_b32 v{t1}, 15, v{vl}")
    a("s_cmp_eq_u32 s54, 0")
    a("s_cbranch_scc0 K2_GEMMU")
    a(f"v_lshlrev_b32 v{t1}, 4, v{t1}")
    a(f"v_lshl_or_b32 v{t0}, v{t0}, 10, v{t1}")
    a(f"v_add_u32 v{t0}, s55, v{t0}")
    a(f"s_mov_b32 s58, {f32(-LOG2E)}")
    a(f"v_mov_b32 v{t1}, {f32(-float(SHIFT))}")
    a("s_nop 1")
    for r in range(4):
        for q in range(4):
            a(f"v_fma_f32 v{XA+4*r+q}, v{ACC+4*q+r}, s58, v{t1}")
        a(f"ds_write_b128 v{t0}, {vr(XA+4*r,4)} offset:{AP+256*r}")
    a("s_branch K2_GEMMDONE")
    a("K2_GEMMU:")
    a(f"v_lshlrev_b32 v{t1}, 1, v{t1}")
    a(f"v_lshl_or_b32 v{t0}, v{t0}, 9, v{t1}")
    a("s_lshr_b32 s58, s55, 1")
    a(f"s_add_u32 s58, s58, {USTG}")
    a(f"v_add_u32 v{t0}, s58, v{t0}")
    a("s_nop 2")
    for q in range(4):
        for r2 in range(2):
            o = XA + 2 * q + r2
            a(f"v_cvt_pk_bf16_f32 v{o}, v{ACC+4*q+2*r2}, v{ACC+4*q+2*r2+1}")
            a(f"ds_write_b16 v{t0}, v{o} offset:{128*(2*r2)+32*q}")
            a(f"ds_write_b16_d16_hi v{t0}, v{o} offset:{128*(2*r2+1)+32*q}")
    a("K2_GEMMDONE:")
    a(f"s_mov_b32 s58, {f32(-LOG2E)}")
    for m in range(4):
        a(f"v_lshlrev_b32 v{WC+m}, 16, v{WC+m}")
        a(f"v_mul_f32 v{WC+m}, s58, v{WC+m}")
    a(f"v_cvt_pk_bf16_f32 v{WC}, v{WC}, v{WC+1}")
    a(f"v_cvt_pk_bf16_f32 v{WC+1}, v{WC+2}, v{WC+3}")
    a("K2_NOGEMM:")
    stamp(a, 3)
    a(f"s_mov_b32 s61, {4*KMAX}")
    a(f"v_mov_b32 v{vone}, 1")
    a("K2_RANK:")
    a("s_sub_u32 s58, s61, 3")
    a(f"v_min_i32 v{veff}, s58, v{vrem}")
    a(f"v_cmpx_lt_i32 vcc, s61, v{vrem}")
    a(f"v_mov_b32 v{t0}, {FLAG}")
    a(f"ds_write_b32 v{t0}, v{vone}")
    a("s_mov_b64 exec, -1")
    for k in range(KMAX):
        a(f"v_cmpx_lt_i32 vcc, {4*k}, v{veff}")
        a(f"s_waitcnt vmcnt({KMAX-1-k})")
        a(f"v_lshrrev_b32 v{HA+k}, 6, v{R+4*k+3}")
        a(f"ds_add_rtn_u32 v{RK+k}, v{HA+k}, v{vone} offset:{HIST}")
    a("s_mov_b64 exec, -1")
    a(f"v_lshlrev_b32 v{t0}, 3, v{vl}")
    a(f"v_mov_b32 v{t1}, {FLAG}")
    a("s_waitcnt lgkmcnt(0)")
    a("s_barrier")
    S0 = 86
    stamp(a, 4)
    if STAMP: a("s_waitcnt lgkmcnt(0)")
    a(f"ds_read_b64 {vr(S0,2)}, v{t0} offset:{HIST}")
    a(f"ds_read_b32 v{S0+2}, v{t1}")
    a("s_waitcnt lgkmcnt(1)")
    a(f"v_add_u32 v{S0+4}, 1, v{S0}")
    a(f"v_add_u32 v{S0+5}, 1, v{S0+1}")
    a(f"v_lshrrev_b32 v{S0+4}, 1, v{S0+4}")
    a(f"v_lshrrev_b32 v{S0+5}, 1, v{S0+5}")
    a(f"v_add_u32 v{S0+6}, v{S0+4}, v{S0+5}")
    a(f"v_mov_b32 v{S0+7}, v{S0+6}")
    wave_scan(a, S0 + 7)
    a(f"v_sub_u32 v{S0+8}, v{S0+7}, v{S0+6}")
    a(f"v_add_u32 v{S0+9}, v{S0+8}, v{S0+4}")
    a(f"v_readlane_b32 s62, v{S0+7}, 63")
    a("s_waitcnt lgkmcnt(0)")
    a(f"v_readfirstlane_b32 s63, v{S0+2}")
    a(f"s_cmp_le_u32 s62, {CAPT}")
    a("s_cbranch_scc1 K2_FITS")
    a("s_cmp_eq_u32 s61, 16")
    a("s_cbranch_scc1 K2_END")
    a("s_barrier")
    a("s_movk_i32 s58, 33")
    a("v_cmp_gt_u32 vcc, s58, v0")
    a("s_mov_b64 exec, vcc")
    for i in range(4):
        a(f"v_mov_b32 v{Z+i}, 0")
    a(f"ds_write_b128 v{vt16}, {vr(Z,4)} offset:{HIST}")
    a("s_mov_b64 exec, -1")
    a("s_mov_b32 s61, 16")
    a("s_waitcnt lgkmcnt(0)")
    a("s_barrier")
    a("s_branch K2_RANK")
    a("K2_FITS:")
    a(f"s_mov_b32 s58, {REC}")
    a(f"v_lshl_add_u32 v{S0+8}, v{S0+8}, 5, s58")
    a(f"v_lshl_add_u32 v{S0+9}, v{S0+9}, 5, s58")
    a(f"ds_write_b64 v{t0}, {vr(S0+8,2)} offset:{START}")
    a("s_add_u32 s64, s62, 63")
    a("s_lshr_b32 s64, s64, 6")
    a("s_max_u32 s64, s64, 16")
    for k in range(KMAX):
        a(f"v_cmpx_lt_i32 vcc, {4*k}, v{veff}")
        a(f"ds_read_b32 v{HA+k}, v{HA+k} offset:{START}")
    a("s_mov_b64 exec, -1")
    D0 = 100
    a(f"v_mov_b32 v{D0}, 0")
    a(f"v_mov_b32 v{D0+1}, 0")
    a(f"v_mov_b32 v{D0+2}, {N}")
    a(f"v_mov_b32 v{D0+3}, {NPB*256}")
    a("s_lshl_b32 s58, s64, 6")
    a("s_add_u32 s58, s58, 4")
    a("s_sub_u32 s58, s58, s62")
    a("s_lshl_b32 s58, s58, 1")
    a("s_lshl_b32 s59, s62, 5")
    a(f"s_add_u32 s59, s59, {REC}")
    a(f"v_add_u32 v{D0+4}, s59, v{vt16}")
    a(f"v_sub_u32 v{D0+5}, s58, v0")
    for i in range(3):
        a(f"v_cmpx_lt_i32 vcc, 0, v{D0+5}")
        a("s_cbranch_execz K2_FILLED")
        a(f"ds_write_b128 v{D0+4}, {vr(D0,4)} offset:{16384*i}")
        a(f"v_subrev_u32 v{D0+5}, 0x400, v{D0+5}")
    a("K2_FILLED:")
    a("s_mov_b64 exec, -1")
    a(f"s_cmp_lt_u32 s{sWV}, 15")
    a("s_cbranch_scc1 K2_NODUMMY")
    for h in range(2):
        a(f"v_lshlrev_b32 v{D0+3}, 9, v{vl}")
        if h:
            a(f"v_add_u32 v{D0+3}, 0x100, v{D0+3}")
        a(f"v_lshl_add_u32 v{D0+4}, v{S0+h}, 4, v{S0+8+h}")
        a(f"v_and_b32 v{D0+5}, 1, v{S0+h}")
        a(f"v_cmpx_eq_u32 vcc, 1, v{D0+5}")
        a(f"ds_write_b128 v{D0+4}, {vr(D0,4)}")
        a("s_mov_b64 exec, -1")
        a("s_nop 0")
    a("K2_NODUMMY:")
    a("s_waitcnt lgkmcnt(0)")
    for k in range(KMAX):
        a(f"v_cmpx_lt_i32 vcc, {4*k}, v{veff}")
        a(f"v_lshl_add_u32 v{HA+k}, v{RK+k}, 4, v{HA+k}")
        a(f"ds_write_b128 v{HA+k}, {vr(R+4*k,4)}")
    a("s_mov_b64 exec, -1")
    G = [24, 36]
    T = [48, 56]
    H = [64, 72]
    AOP = 80
    APR = 88
    IDX = 92
    NO = 96
    AAD = 97
    P_, D_, N_ = 102, 106, 110
    ACCD, ACCN = 114, 118
    ID = 122
    vrs, vra, vinc, v12c, vF, vZ = 124, 125, 126, 127, 9, 10
    vTL = 101
    a(f"v_and_b32 v{t0}, 15, v{vl}")
    a(f"v_lshlrev_b32 v{IDX+1}, 4, v{t0}")
    a(f"v_mov_b32 v{IDX+3}, v{IDX+1}")
    a(f"v_mul_u32_u24 v{v12c}, 12, v{t0}")
    a(f"v_and_b32 v{t0}, 1, v{vl}")
    a(f"v_lshlrev_b32 v{t0}, 4, v{t0}")
    a("s_movk_i32 s58, 0x3f80")
    a(f"v_lshlrev_b32 v{t0}, v{t0}, s58")
    a(f"v_and_b32 v{t1}, 2, v{vl}")
    a(f"v_cmp_eq_u32 vcc, 0, v{t1}")
    a(f"v_lshrrev_b32 v{vW}, 4, v{vl}")
    a(f"v_bfe_u32 v{vX}, v{vl}, 2, 2")
    a(f"v_cndmask_b32 v{ID}, 0, v{t0}, vcc")
    a(f"v_cndmask_b32 v{ID+1}, v{t0}, 0, vcc")
    a(f"v_cmp_eq_u32 vcc, v{vW}, v{vX}")
    a(f"s_lshl_b32 s58, s64, 5")
    a(f"s_lshl_b32 s59, s{sWV}, 2")
    a(f"v_cndmask_b32 v{AOP+2}, 0, v{ID}, vcc")
    a(f"v_cndmask_b32 v{AOP+3}, 0, v{ID+1}, vcc")
    a(f"v_mov_b32 v{AOP+6}, v{AOP+2}")
    a(f"v_mov_b32 v{AOP+7}, v{AOP+3}")
    a("s_mul_i32 s59, s59, s58")
    a(f"s_add_u32 s59, s59, {REC}")
    a(f"v_mov_b32 v{t1}, s59")
    a(f"v_mad_u32_u24 v{vrs}, v{vW}, s58, v{t1}")
    a(f"v_mad_u32_u24 v{vra}, v{vX}, s58, v{t1}")
    a(f"v_lshrrev_b32 v{vTL}, 2, v{IDX+1}")
    a(f"v_add_u32 v{vTL}, v{vTL}, v{vrs}")
    a(f"v_and_b32 v{t0}, 3, v{vl}")
    a(f"v_cmp_eq_u32 vcc, v{vW}, v{t0}")
    a(f"v_mov_b32 v{vZ}, {ZERO}")
    a(f"v_mov_b32 v{t0}, 0x80")
    a(f"v_cndmask_b32 v{vra}, v{vZ}, v{vra}, vcc")
    a(f"v_cndmask_b32 v{vinc}, 0, v{t0}, vcc")
    for i in range(8):
        a(f"v_mov_b32 v{ACCD+i}, 0")
    a(f"s_mov_b32 s66, {f32(2.0**-SHIFT)}")
    a("s_mov_b32 s67, s66")
    a("s_waitcnt lgkmcnt(0)")
    for g in G:
        for o in (0, 6):
            a(f"v_mov_b32 v{g+o}, v{WC}")
            a(f"v_mov_b32 v{g+o+1}, v{WC+1}")
    a("s_barrier")
    stamp(a, 5)
    if STAMP: a("s_waitcnt lgkmcnt(0)")

    def gload(st):
        g = G[st & 1]
        if OPT.get("nogather"):
            return
        a(f"buffer_load_dwordx4 {vr(g+2,4)}, {vr(IDX,2)}, s[24:27], 0 idxen offen")
        a(f"buffer_load_dwordx4 {vr(g+8,4)}, {vr(IDX+2,2)}, s[24:27], 0 idxen offen")
    def rd_idx(p):
        a(f"ds_read_b32 v{IDX}, v{vrs} offset:{32*p+8}")
        a(f"ds_read_b32 v{IDX+2}, v{vrs} offset:{32*p+24}")
    def rd_no(p, dst=NO):
        a(f"ds_read_b32 v{dst}, v{vrs} offset:{32*p+12}")
    def rd_a(p, aad):
        a(f"ds_read_b128 {vr(APR,4)}, v{aad} offset:{AP}")
        a(f"ds_read_b64 {vr(AOP,2)}, v{vra} offset:{32*p}")
        a(f"ds_read_b64 {vr(AOP+4,2)}, v{vra} offset:{32*p+16}")
    def mf(st):
        g, t, h = G[st & 1], T[st & 1], H[st & 1]
        return [f"v_mfma_f32_16x16x32_bf16 {vr(t,4)}, {vr(AOP,4)}, {vr(g,4)}, {vr(APR,4)}",
                f"v_mfma_f32_16x16x32_bf16 {vr(t+4,4)}, {vr(AOP+4,4)}, {vr(g+6,4)}, {vr(APR,4)}",
                f"v_mfma_f32_4x4x4_16b_bf16 {vr(h,4)}, {vr(ID,2)}, {vr(g+4,2)}, 0",
                f"v_mfma_f32_4x4x4_16b_bf16 {vr(h+4,4)}, {vr(ID,2)}, {vr(g+10,2)}, 0"]
    MK = [68, 70]
    rd_idx(0)
    rd_no(0, AAD)
    rd_no(1, AAD + 1)
    a("s_waitcnt lgkmcnt(2)")
    gload(0)
    rd_idx(1)
    a("s_waitcnt lgkmcnt(2)")
    a(f"v_add_u32 v{AAD}, v{AAD}, v{IDX+1}")
    a(f"v_add_u32 v{AAD+1}, v{AAD+1}, v{IDX+1}")
    a("s_waitcnt lgkmcnt(0)")
    gload(1)
    rd_a(0, AAD)
    rd_idx(2)
    a(f"v_cmp_ne_u32 s[{MK[0]}:{MK[0]+1}], v{AAD}, v{AAD+1}")
    a("s_waitcnt vmcnt(2) lgkmcnt(0)")
    for m in mf(0):
        a(m)
    gload(2)
    a("s_nop 1")
    rd_a(1, AAD + 1)
    rd_idx(3)
    rd_no(2)
    a("s_mov_b32 s65, s64")
    stamp(a, 6)
    if STAMP: a("s_waitcnt lgkmcnt(0)")
    a(".p2align 5")
    a("K2_LOOP:")
    def pk(op, d, x, y, z=None):
        for i in (0, 2):
            if z is None:
                a(f"v_pk_{op}_f32 {vr(d+i,2)}, {vr(x+i,2)}, {vr(y+i,2)}")
            else:
                a(f"v_pk_{op}_f32 {vr(d+i,2)}, {vr(x+i,2)}, {vr(y+i,2)}, {vr(z+i,2)}")
    def flush(j):
        a(f"v_sub_u32 v{vF}, v{AAD+j}, v{v12c}")
        op = "ds_write_b32"
        for q in range(4):
            a(f"{op} v{vF}, v{ACCD+q} offset:{DEN+64*q}")
        for q in range(4):
            a(f"{op} v{vF}, v{ACCN+q} offset:{NUM+64*q}")
    for j in range(4):
        t, h = T[j & 1], H[j & 1]
        e = [f"v_exp_f32_e64 v{t+i}, v{t+i} clamp" for i in range(8)]
        m = mf(j + 1)
        a("s_waitcnt vmcnt(2) lgkmcnt(3)")
        for x in (e[0], m[0], e[1], m[1], e[2], m[2], e[3], m[3], e[4]):
            a(x)
        a("s_cmp_gt_u32 s65, 3")
        a("s_waitcnt lgkmcnt(0)")
        a(f"s_cbranch_scc0 K2_SKIP{j}")
        gload(j + 1)
        a(f"K2_BACK{j}:")
        a(e[5])
        a(f"v_add_u32 v{AAD+(j+2)%4}, v{NO}, v{IDX+1}")
        a(e[6])
        rd_a(j + 2, AAD + (j + 2) % 4)
        rd_idx(j + 4)
        rd_no(j + 3)
        a(e[7])
        mk = MK[(j + 1) & 1]
        a(f"v_cmp_ne_u32 s[{mk}:{mk+1}], v{AAD+(j+1)%4}, v{AAD+(j+2)%4}")
        for i in range(4):
            a(f"v_pk_add_f32 {vr(t+2*i,2)}, {vr(t+2*i,2)}, s[66:67]")
        pk("mul", P_, t, t + 4)
        pk("add", D_, t, t + 4)
        pk("mul", N_, h, t + 4)
        for i in range(4):
            a(f"v_rcp_f32 v{P_+i}, v{P_+i}")
        pk("fma", N_, h + 4, t, N_)
        if j == 3:
            a(f"v_add_u32 v{vrs}, 0x80, v{vrs}")
            a(f"v_add_u32 v{vra}, v{vinc}, v{vra}")
        pk("fma", ACCD, D_, P_, ACCD)
        pk("fma", ACCN, N_, P_, ACCN)
        a("s_sub_u32 s65, s65, 1")
        a("s_cmp_eq_u32 s65, 0")
        a(f"s_cbranch_scc1 K2_MAINDONE")
        mk = MK[j & 1]
        a(f"s_cmp_lg_u64 s[{mk}:{mk+1}], 0")
        if not OPT.get("noflush"):
            a(f"s_cbranch_scc1 K2_FLUSH{j}")
        if j == 3:
            a("s_branch K2_LOOP")
        else:
            a(f"K2_FBACK{j}:")
    for j in range(4):
        a(f"K2_SKIP{j}:")
        a("s_waitcnt vmcnt(0)")
        a(f"s_branch K2_BACK{j}")
        a(f"K2_FLUSH{j}:")
        mk = MK[j & 1]
        a(f"s_mov_b64 exec, s[{mk}:{mk+1}]")
        flush(j)
        a(f"ds_read_b128 {vr(ACCD,4)}, v{vZ}")
        a(f"ds_read_b128 {vr(ACCN,4)}, v{vZ}")
        a("s_mov_b64 exec, -1")
        a("s_branch K2_LOOP" if j == 3 else f"s_branch K2_FBACK{j}")
    a("K2_MAINDONE:")
    stamp(a, 7)
    a("s_waitcnt lgkmcnt(0)")
    for q in range(4):
        a(f"ds_write_b32 v{vTL}, v{ACCD+q} offset:{64*q}")
    for q in range(4):
        a(f"ds_write_b32 v{vTL}, v{ACCN+q} offset:{256+64*q}")
    a(f"v_lshrrev_b32 v{t0}, 3, v0")
    a(f"v_lshlrev_b32 v11, 2, v{t0}")
    a(f"v_add_u32 v11, {START}, v11")
    a(f"ds_read2_b32 v[12:13], v11 offset0:0 offset1:1")
    a("v_cvt_f32_u32 v14, s64")
    a("v_rcp_f32 v14, v14")
    a(f"s_movk_i32 s58, {NPB*8}")
    a("v_cmp_gt_u32 vcc, s58, v0")
    a(f"v_mul_f32 v14, {f32(2.0**20)}, v14")
    a("v_cvt_u32_f32 v14, v14")
    a("v_add_u32 v14, 1, v14")
    a(f"v_and_b32 v{t1}, 7, v0")
    a(f"v_lshlrev_b32 v18, 5, v{t1}")
    a(f"v_lshl_or_b32 v11, v{t0}, 8, v18")
    a(f"v_lshrrev_b32 v19, 1, v11")
    a(f"v_add_u32 v19, {USTG}, v19")
    a("s_lshl_b32 s59, s64, 5")
    a("s_waitcnt lgkmcnt(0)")
    for i in range(2):
        a(f"v_subrev_u32 v{12+i}, {REC}, v{12+i}")
        a(f"v_lshrrev_b32 v{12+i}, 5, v{12+i}")
        a(f"v_mul_u32_u24 v{12+i}, v{12+i}, v14")
        a(f"v_lshrrev_b32 v{12+i}, 20, v{12+i}")
    a("v_sub_u32 v13, v13, v12")
    a("v_mad_u32_u24 v12, v12, s59, v18")
    a(f"v_add_u32 v12, {REC}, v12")
    a("s_waitcnt vmcnt(0) lgkmcnt(0)")
    a("s_barrier")
    stamp(a, 8)
    if STAMP: a("s_waitcnt lgkmcnt(0)")
    a("s_mov_b64 exec, vcc")
    a("s_mov_b64 s[68:69], vcc")
    FD, FN, FU = 24, 32, 40
    TD = 64
    a(f"ds_read_b128 {vr(FD,4)}, v11 offset:{DEN}")
    a(f"ds_read_b128 {vr(FD+4,4)}, v11 offset:{DEN+16}")
    a(f"ds_read_b128 {vr(FN,4)}, v11 offset:{NUM}")
    a(f"ds_read_b128 {vr(FN+4,4)}, v11 offset:{NUM+16}")
    a(f"ds_read_b128 {vr(FU,4)}, v19")
    a("K2_TAILS:")
    a("v_cmpx_lt_i32 vcc, 0, v13")
    a("s_cbranch_execz K2_TAILSDONE")
    a(f"ds_read_b128 {vr(TD,4)}, v12")
    a(f"ds_read_b128 {vr(TD+4,4)}, v12 offset:16")
    a(f"ds_read_b128 {vr(TD+8,4)}, v12 offset:256")
    a(f"ds_read_b128 {vr(TD+12,4)}, v12 offset:272")
    a("v_add_u32 v12, s59, v12")
    a("v_subrev_u32 v13, 1, v13")
    a("s_waitcnt lgkmcnt(0)")
    for i in range(8):
        a(f"v_pk_add_f32 {vr(FD+2*i,2)}, {vr(FD+2*i,2)}, {vr(TD+2*i,2)}")
    a("s_branch K2_TAILS")
    a("K2_TAILSDONE:")
    a("s_mov_b64 exec, s[68:69]")
    a("s_or_b32 s58, s60, s63")
    a("s_cmp_eq_u32 s58, 0")
    a("s_cbranch_scc1 K2_FINAL")
    a("s_lshl_b32 s58, s2, 16")
    a(f"s_add_u32 s58, s58, {WS_SPILL}")
    srd(a, 32, 46, 65536, add="s58")
    a(f"v_lshlrev_b32 v18, 2, v{vt16}")
    a("s_waitcnt lgkmcnt(0)")
    a("s_cmp_eq_u32 s60, 0")
    a("s_cbranch_scc1 K2_NOSPILLIN")
    for i in range(4):
        a(f"buffer_load_dwordx4 {vr(TD+4*i,4)}, v18, s[32:35], 0 offen offset:{16*i} sc1")
    a("s_waitcnt vmcnt(0)")
    for i in range(8):
        a(f"v_pk_add_f32 {vr(FD+2*i,2)}, {vr(FD+2*i,2)}, {vr(TD+2*i,2)}")
    a("K2_NOSPILLIN:")
    a("s_cmp_eq_u32 s63, 0")
    a("s_cbranch_scc1 K2_FINAL")
    for i in range(4):
        a(f"buffer_store_dwordx4 {vr(FD+4*i,4)}, v18, s[32:35], 0 offen offset:{16*i} sc1")
    for i in range(4):
        a(f"v_mov_b32 v{Z+i}, 0")
    for o in (DEN, DEN + 16, NUM, NUM + 16):
        a(f"ds_write_b128 v11, {vr(Z,4)} offset:{o}")
    a("s_mov_b64 exec, -1")
    for i in range(4):
        a(f"v_mov_b32 v{Z+i}, 0")
    a("s_movk_i32 s58, 33")
    a("v_cmp_gt_u32 vcc, s58, v0")
    a("s_mov_b64 exec, vcc")
    a(f"ds_write_b128 v{vt16}, {vr(Z,4)} offset:{HIST}")
    a("s_mov_b64 exec, -1")
    a(f"v_subrev_u32 v{vrem}, s61, v{vrem}")
    a("s_lshl_b32 s58, s61, 4")
    a(f"v_add_u32 v{vbase}, s58, v{vbase}")
    a("s_add_u32 s60, s60, 1")
    a("s_waitcnt vmcnt(0)")
    a("s_cmp_le_u32 s60, 128")
    a("s_cbranch_scc1 K2_ROUND")
    a("s_endpgm")
    a("K2_FINAL:")
    a(f"s_mov_b32 s58, {f32(1e-6 * 2.0**SHIFT)}")
    XU = 48
    for i in range(4):
        a(f"v_lshlrev_b32 v{XU+2*i}, 16, v{XF+i}")
        a(f"v_and_b32 v{XU+2*i+1}, 0xffff0000, v{XF+i}")
    a("s_waitcnt lgkmcnt(0)")
    for i in range(8):
        a(f"v_add_f32 v{FD+i}, s58, v{FD+i}")
    for i in range(8):
        a(f"v_rcp_f32 v{FD+i}, v{FD+i}")
    for i in range(4):
        a(f"v_lshlrev_b32 v{XU+8+2*i}, 16, v{FU+i}")
        a(f"v_and_b32 v{XU+8+2*i+1}, 0xffff0000, v{FU+i}")
    for i in range(8):
        a(f"v_fmac_f32 v{XU+8+i}, v{FN+i}, v{FD+i}")
    for i in range(8):
        a(f"v_max_f32 v{XU+8+i}, 0, v{XU+8+i}")
    for i in range(8):
        a(f"v_add_f32 v{XU+i}, v{XU+i}, v{XU+8+i}")
    for i in range(4):
        a(f"v_cvt_pk_bf16_f32 v{FD+i}, v{XU+2*i}, v{XU+2*i+1}")
    a(f"buffer_store_dwordx4 {vr(FD,4)}, v{vOUT}, s[20:23], s52 offen")
    a("K2_FIN:")
    stamp(a, 9)
    stamp_out(a, 10, 46, sWV, 0)
    a("K2_END:")
    a("s_endpgm")

HEADER = """; GatedGCN message passing, two launches.
"""

def descriptor(name, vgpr, sgpr):
    return f""".p2align 6
.amdhsa_kernel {name}
  .amdhsa_next_free_vgpr {vgpr}
  .amdhsa_next_free_sgpr {sgpr}
  .amdhsa_accum_offset {(vgpr+3)//4*4}
  .amdhsa_group_segment_fixed_size 0
  .amdhsa_kernarg_size 96
  .amdhsa_user_sgpr_count 2
  .amdhsa_user_sgpr_kernarg_segment_ptr 1
  .amdhsa_system_sgpr_workgroup_id_x 1
  .amdhsa_float_denorm_mode_32 3
.end_amdhsa_kernel
"""

def main():
    out = HEADER
    out += f"; @launch kernel=k1_kernel grid=({NGEMM+NCH},1,1) block=(512,1,1) lds=65536\n"
    out += f"; @launch kernel=k2_kernel grid=(256,1,1) block=(1024,1,1) lds={K2_LDS}\n"
    out += '.amdgcn_target "amdgcn-amd-amdhsa--gfx950"\n.text\n'
    for name, g in (("k1_kernel", gen_k1), ("k2_kernel", gen_k2)):
        a = A()
        g(a)
        out += f".globl {name}\n.p2align 8\n.type {name},@function\n" + a.text()
    out += '.section .rodata,"a"\n'
    out += descriptor("k1_kernel", 100, 102 if STAMP else 64)
    out += descriptor("k2_kernel", 128, 102 if STAMP else 80)
    path = sys.argv[1] if len(sys.argv) > 1 else "standalone__edge_featured_mpnn_gatedgcn__graph.s"
    open(path, "w").write(out)

main()
```

```python
import sys, struct

N = 12500
E = 400000
NPB = 98
NBK = 128
NCH = 250
CHE = 1600
NGEMM = 256
import os
WSB = int(os.environ.get("WSB", "0"), 0)
TS = 0x310000
WS_REC = WSB + 0x800000
REC_STRIDE = 19200
WS_OFF = WSB + 0x1000000
WS_SPILL = 0x4000000
LOG2E = 1.4426950408889634
SHIFT = 40

def f32(x):
    return "0x%08x" % struct.unpack("<I", struct.pack("<f", x))[0]

import os
STAMP = os.environ.get("STAMP") == "1"
OPT = dict(kv.split("=") for kv in os.environ.get("OPT", "").split(",") if kv)
WS_STAMP = 0x2000000
def stamp(a, i):
    if STAMP:
        a(f"s_memtime s[{80+2*i}:{81+2*i}]")
        if i == 0:
            a("s_memrealtime s[100:101]")
def stamp_out(a, n, wsptr, wave_sreg, base):
    if not STAMP:
        return
    a("s_memrealtime s[78:79]")
    a("s_waitcnt vmcnt(0) lgkmcnt(0)")
    a("s_mov_b64 exec, 1")
    srd(a, 72, wsptr, 1 << 20, add=hex(WS_STAMP + base))
    a(f"s_lshl_b32 s76, s2, 4")
    a(f"s_add_u32 s76, s76, s{wave_sreg}")
    a(f"s_lshl_b32 s76, s76, 6")
    a("v_mov_b32 v1, s76")
    for i in range(n):
        a(f"v_mov_b32 v2, s{80+2*i}")
        a(f"buffer_store_dword v2, v1, s[72:75], 0 offen offset:{4*i}")
        a("s_nop 1")
    a("v_mov_b32 v2, s100")
    a(f"buffer_store_dword v2, v1, s[72:75], 0 offen offset:56")
    a("s_nop 1")
    a("v_mov_b32 v2, s78")
    a(f"buffer_store_dword v2, v1, s[72:75], 0 offen offset:60")
    a("s_waitcnt vmcnt(0)")

DBG = os.environ.get("DBG") == "1"
def dbg_start(a):
    if DBG:
        a("s_memrealtime s[100:101]")
        a("s_memtime s[98:99]")
        a("s_load_dwordx2 s[96:97], s[0:1], 80")
def dbg_end(a, kid):
    if not DBG:
        return
    a("s_waitcnt vmcnt(0) lgkmcnt(0)")
    a("s_memrealtime s[94:95]")
    a("s_memtime s[92:93]")
    a("s_waitcnt lgkmcnt(0)")
    a("s_mov_b64 exec, 1")
    srd(a, 72, 96, 256)
    a("s_not_b32 s100, s100")
    a("s_sub_u32 s92, s92, s98")
    a("v_mov_b32 v1, 0")
    a(f"v_mov_b32 v2, {kid}")
    a("v_mov_b32 v3, s100")
    a("v_mov_b32 v4, s94")
    a("v_mov_b32 v5, s92")
    a("buffer_atomic_umax v2, v1, s[72:75], 0 offen")
    a("buffer_atomic_umax v3, v1, s[72:75], 0 offen offset:4")
    a("buffer_atomic_umax v4, v1, s[72:75], 0 offen offset:8")
    a("buffer_atomic_umax v5, v1, s[72:75], 0 offen offset:12")
    a("s_waitcnt vmcnt(0)")

class A:
    def __init__(self):
        self.l = []
    def __call__(self, s=""):
        for line in s.split("\n"):
            line = line.strip()
            if not line:
                continue
            if line.endswith(":"):
                self.l.append(line)
            else:
                self.l.append("    " + line)
    def text(self):
        return "\n".join(self.l) + "\n"

def vr(b, n):
    return f"v[{b}:{b+n-1}]" if n > 1 else f"v{b}"
def sr(b, n):
    return f"s[{b}:{b+n-1}]" if n > 1 else f"s{b}"

def srd(a, d, ptr, size, add=None, stride=0):
    if add is None:
        a(f"s_mov_b32 s{d}, s{ptr}")
        a(f"s_and_b32 s{d+1}, s{ptr+1}, 0xffff")
    else:
        a(f"s_add_u32 s{d}, s{ptr}, {add}")
        a(f"s_addc_u32 s{d+1}, s{ptr+1}, 0")
        a(f"s_and_b32 s{d+1}, s{d+1}, 0xffff")
    if stride:
        a(f"s_or_b32 s{d+1}, s{d+1}, {hex(stride << 16)}")
    a(f"s_mov_b32 s{d+2}, {size}")
    a(f"s_mov_b32 s{d+3}, 0x00020000")

def wave_scan(a, v):
    for sh in (1, 2, 4, 8):
        a("s_nop 1")
        a(f"v_add_u32_dpp v{v}, v{v}, v{v} row_shr:{sh} row_mask:0xf bank_mask:0xf bound_ctrl:0")
    a("s_nop 1")
    a(f"v_add_u32_dpp v{v}, v{v}, v{v} row_bcast:15 row_mask:0xa bank_mask:0xf")
    a("s_nop 1")
    a(f"v_add_u32_dpp v{v}, v{v}, v{v} row_bcast:31 row_mask:0xc bank_mask:0xf")

def gemm_dma_addrs(a, vl, vW, vX, t0, t1):
    a(f"v_lshrrev_b32 v{t0}, 3, v{vl}")
    a(f"v_and_b32 v{t1}, 2, v{t0}")
    a(f"v_and_b32 v{vW}, 7, v{vl}")
    a(f"v_xor_b32 v{vW}, v{vW}, v{t1}")
    a(f"v_lshlrev_b32 v{vW}, 4, v{vW}")
    a(f"v_lshl_or_b32 v{vW}, v{t0}, 8, v{vW}")
    a(f"v_lshrrev_b32 v{t0}, 4, v{vl}")
    a(f"v_and_b32 v{t1}, 15, v{vl}")
    a(f"v_xor_b32 v{vX}, v{t1}, v{t0}")
    a(f"v_lshlrev_b32 v{vX}, 4, v{vX}")
    a(f"v_lshl_or_b32 v{vX}, v{t0}, 8, v{vX}")

def gemm_read_addrs(a, vl, vA, vB, t0, t1):
    a(f"v_lshrrev_b32 v{t0}, 4, v{vl}")
    a(f"v_and_b32 v{t1}, 15, v{vl}")
    a(f"v_xor_b32 v{vA}, v{t1}, v{t0}")
    a(f"v_lshlrev_b32 v{vA}, 4, v{vA}")
    a(f"v_lshl_or_b32 v{vA}, v{t1}, 8, v{vA}")
    a(f"v_bfe_u32 v{t1}, v{vl}, 2, 2")
    a(f"v_lshl_add_u32 v{vB}, v{t0}, 3, v{t1}")
    a(f"v_lshlrev_b32 v{vB}, 7, v{vB}")
    a(f"v_and_b32 v{t1}, 2, v{t1}")
    a(f"v_and_b32 v{t0}, 1, v{t0}")
    a(f"v_lshl_or_b32 v{t1}, v{t0}, 2, v{t1}")
    a(f"v_bfe_u32 v{t0}, v{vl}, 1, 1")
    a(f"v_xor_b32 v{t0}, v{t0}, v{t1}")
    a(f"v_lshl_or_b32 v{vB}, v{t0}, 4, v{vB}")
    a(f"v_and_b32 v{t0}, 1, v{vl}")
    a(f"v_lshl_or_b32 v{vB}, v{t0}, 3, v{vB}")

def bucket_slice(a, sBK, sSL):
    a(f"s_bfe_u32 s{sSL}, s2, 0x10002")
    a("s_lshr_b32 s3, s2, 3")
    a(f"s_and_b32 s{sBK}, s2, 3")
    a(f"s_lshl_b32 s{sBK}, s{sBK}, 5")
    a(f"s_or_b32 s{sBK}, s{sBK}, s3")

ST = " sc1" if OPT.get("sc1", "1") == "1" else ""

def gen_k1(a):
    a("k1_kernel:")
    a(f"s_cmp_ge_u32 s2, {NGEMM + NCH}")
    a("s_cbranch_scc1 K1_END")
    stamp(a, 0)
    a(f"s_cmp_ge_u32 s2, {NGEMM}")
    a("s_cbranch_scc1 K1_PART")
    a("s_load_dwordx2 s[4:5], s[0:1], 0")
    a("s_load_dwordx2 s[6:7], s[0:1], 40")
    a("s_load_dwordx2 s[28:29], s[0:1], 64")
    a("s_load_dwordx2 s[30:31], s[0:1], 88")
    vl, vW, vX, vA, vB, t0, t1 = 1, 2, 3, 4, 5, 6, 7
    a(f"v_and_b32 v{vl}, 63, v0")
    a(f"v_lshrrev_b32 v{t0}, 6, v0")
    bucket_slice(a, 34, 33)
    a(f"v_readfirstlane_b32 s32, v{t0}")
    gemm_dma_addrs(a, vl, vW, vX, t0, t1)
    a(f"v_xor_b32 v8, 64, v{vW}")
    a(f"v_xor_b32 v9, 64, v{vX}")
    a(f"v_xor_b32 v10, 0x80, v{vX}")
    a(f"v_xor_b32 v11, 0xc0, v{vX}")
    a("s_lshl_b32 s35, s32, 12")
    a("s_lshl_b32 s36, s33, 7")
    a("s_add_u32 s36, s36, s35")
    a("s_add_u32 s37, s36, 2048")
    a(f"s_mul_i32 s44, s34, {NPB*256}")
    a("s_add_u32 s38, s44, s35")
    a(f"s_add_u32 s44, s44, {NPB*256}")
    a(f"s_min_u32 s44, s44, {N*256}")
    a("s_lshl_b32 s39, s32, 11")
    a("s_mul_i32 s40, s33, %d" % TS)
    if WSB:
        a(f"s_add_u32 s40, s40, {WSB}")
    a("s_waitcnt lgkmcnt(0)")
    stamp(a, 1)
    srd(a, 8, 4, "s44")
    a("s_add_u32 s41, s35, 32768")
    xr = [vX, 9, 10, 11]
    a("s_mov_b32 s45, s38")
    for i in range(4):
        a("s_mov_b32 m0, s41")
        a("s_add_u32 s41, s41, 1024")
        a(f"buffer_load_dwordx4 v{xr[i]}, s[8:11], s45 offen lds")
        if i < 3:
            a("s_add_u32 s45, s45, 1024")
    srd(a, 12, 6, 32768)
    srd(a, 16, 28, 32768)
    a("s_mov_b32 m0, s39")
    a("s_add_u32 s41, s39, 1024")
    a(f"buffer_load_dwordx4 v{vW}, s[12:15], s36 offen lds")
    a("s_mov_b32 m0, s41")
    a("s_add_u32 s41, s39, 16384")
    a("buffer_load_dwordx4 v8, s[12:15], s37 offen lds")
    a("s_mov_b32 m0, s41")
    a("s_add_u32 s41, s39, 17408")
    a(f"buffer_load_dwordx4 v{vW}, s[16:19], s36 offen lds")
    a("s_mov_b32 m0, s41")
    a("s_nop 0")
    a("buffer_load_dwordx4 v8, s[16:19], s37 offen lds")
    srd(a, 20, 30, "s44", add="s40")
    gemm_read_addrs(a, vl, vA, vB, t0, t1)
    a("s_add_u32 s41, s35, 32768")
    a(f"v_add_u32 v{vA}, s41, v{vA}")
    for st in range(1, 4):
        a(f"v_xor_b32 v{11+st}, {64*st}, v{vA}")
    for q in range(1, 4):
        a(f"v_xor_b32 v{14+q}, {32*q}, v{vB}")
    aA = [vA, 12, 13, 14]
    aB = [vB, 15, 16, 17]
    a(f"v_lshrrev_b32 v{t0}, 4, v{vl}")
    a(f"v_and_b32 v{t1}, 15, v{vl}")
    a(f"v_lshlrev_b32 v{t1}, 4, v{t1}")
    a(f"v_lshl_or_b32 v18, v{t0}, 10, v{t1}")
    a(f"s_mov_b32 s42, {f32(-LOG2E)}")
    a("s_mov_b32 s43, s42")
    stamp(a, 2)
    a("s_waitcnt vmcnt(0)")
    stamp(a, 3)
    a("s_barrier")
    stamp(a, 4)
    if STAMP: a("s_waitcnt lgkmcnt(0)")
    a("s_cmp_eq_u32 s32, 7")
    a("s_cbranch_scc1 K1_DUMMY")
    XA = 20
    for st in range(4):
        a(f"ds_read_b128 {vr(XA+4*st,4)}, v{aA[st]}")
    WB = 36
    ACC = 68
    seq = [(st, m) for st in range(4) for m in range(2)]
    def wreads_half(n):
        st, m = seq[n]
        base = WB + 16 * (n & 1)
        for q in range(4):
            for u in range(2):
                a(f"ds_read_b64_tr_b16 {vr(base+4*q+2*u,2)}, v{aB[q]} offset:{m*16384+st*4096+u*512}")
    wreads_half(0)
    for n, (st, m) in enumerate(seq):
        if n + 1 < len(seq):
            a("s_waitcnt lgkmcnt(4)")
            wreads_half(n + 1)
            a("s_waitcnt lgkmcnt(8)")
        else:
            a("s_waitcnt lgkmcnt(0)")
        base = WB + 16 * (n & 1)
        for q in range(4):
            d = ACC + 16 * m + 4 * q
            c = "0" if st == 0 else vr(d, 4)
            a(f"v_mfma_f32_16x16x32_bf16 {vr(d,4)}, {vr(XA+4*st,4)}, {vr(base+4*q,4)}, {c}")
    stamp(a, 5)
    a("s_nop 3")
    for i in range(8):
        a(f"v_pk_mul_f32 {vr(ACC+2*i,2)}, {vr(ACC+2*i,2)}, s[42:43]")
    for r in range(4):
        o = 20 + 4 * r
        a(f"v_cvt_pk_bf16_f32 v{o}, v{ACC+r}, v{ACC+4+r}")
        a(f"v_cvt_pk_bf16_f32 v{o+1}, v{ACC+8+r}, v{ACC+12+r}")
        a(f"v_cvt_pk_bf16_f32 v{o+2}, v{ACC+16+r}, v{ACC+20+r}")
        a(f"v_cvt_pk_bf16_f32 v{o+3}, v{ACC+24+r}, v{ACC+28+r}")
        a(f"buffer_store_dwordx4 {vr(o,4)}, v18, s[20:23], s38 offen offset:{256*r}{ST}")
    stamp(a, 6)
    a("s_branch K1_GEND")
    a("K1_DUMMY:")
    a("s_cmp_lg_u32 s34, 0")
    a("s_cbranch_scc1 K1_GEND")
    a(f"s_mov_b32 s22, {(N+1)*256}")
    a(f"s_mov_b32 s41, {N*256}")
    a("v_mov_b32 v36, 0x70007000")
    a("v_mov_b32 v37, 0x70007000")
    a("v_mov_b32 v38, 0")
    a("v_mov_b32 v39, 0")
    a("s_mov_b64 exec, 0xffff")
    a(f"buffer_store_dwordx4 v[36:39], v18, s[20:23], s41 offen{ST}")
    a("K1_GEND:")
    if STAMP:
        a("s_waitcnt vmcnt(0)")
        stamp(a, 7); stamp(a, 8); stamp(a, 9)
        stamp_out(a, 10, 30, 32, 0x100000)
    a("s_endpgm")
    a("K1_PART:")
    HIST, START, RECL = 0, 512, 1024
    a("s_load_dwordx2 s[4:5], s[0:1], 8")
    a("s_load_dwordx4 s[28:31], s[0:1], 16")
    a("s_load_dwordx2 s[6:7], s[0:1], 88")
    a(f"s_sub_u32 s32, s2, {NGEMM}")
    a(f"s_mul_i32 s33, s32, {CHE*4}")
    a("s_lshl_b32 s34, s33, 1")
    a("v_lshlrev_b32 v1, 4, v0")
    a("v_lshlrev_b32 v2, 5, v0")
    a("v_lshlrev_b32 v3, 2, v0")
    a("v_mov_b32 v40, 0")
    a("v_mov_b32 v41, 1")
    a(f"v_cmp_gt_u32 s[36:37], 64, v0")
    a(f"s_movk_i32 s35, {CHE//4}")
    a(f"v_cmp_gt_u32 s[38:39], s35, v0")
    a("s_movk_i32 s35, 128")
    a(f"v_cmp_gt_u32 vcc, s35, v0")
    a("s_mov_b64 exec, vcc")
    a(f"ds_write_b32 v3, v40 offset:{HIST}")
    a("s_mov_b64 exec, s[38:39]")
    a("s_waitcnt lgkmcnt(0)")
    stamp(a, 1)
    srd(a, 8, 30, E * 4)
    a("buffer_load_dwordx4 v[4:7], v1, s[8:11], s33 offen")
    srd(a, 12, 28, E * 4)
    srd(a, 16, 4, E * 8)
    a("buffer_load_dwordx4 v[8:11], v1, s[12:15], s33 offen")
    a("buffer_load_dwordx4 v[12:15], v2, s[16:19], s34 offen")
    a("buffer_load_dwordx4 v[16:19], v2, s[16:19], s34 offen offset:16")
    a(f"s_mul_i32 s35, s32, {REC_STRIDE}")
    a(f"s_add_u32 s35, s35, {WS_REC}")
    srd(a, 20, 6, REC_STRIDE, add="s35")
    srd(a, 24, 6, NBK * 1024, add=hex(WS_OFF))
    a("s_movk_i32 s35, -98")
    a("s_mov_b64 exec, -1")
    a("v_and_b32 v42, 63, v0")
    a("v_lshlrev_b32 v42, 3, v42")
    a("v_lshlrev_b32 v54, 8, v42")
    a("s_lshl_b32 s41, s32, 2")
    a("s_mov_b64 exec, s[38:39]")
    a("s_barrier")
    a("s_waitcnt vmcnt(3)")
    stamp(a, 2)
    for j in range(4):
        a(f"v_mul_u32_u24 v{20+j}, 10700, v{4+j}")
        a(f"v_lshrrev_b32 v{20+j}, 20, v{20+j}")
        a(f"v_lshlrev_b32 v{24+j}, 2, v{20+j}")
        a(f"ds_add_rtn_u32 v{28+j}, v{24+j}, v41 offset:{HIST}")
    for j in range(4):
        a(f"v_mad_i32_i24 v{32+j}, v{20+j}, s35, v{4+j}")
    a("s_mov_b64 exec, -1")
    a("s_waitcnt lgkmcnt(0)")
    a("s_barrier")
    stamp(a, 3)
    a(f"ds_read_b64 v[44:45], v42 offset:{HIST}")
    a("s_waitcnt lgkmcnt(0)")
    a("v_add_u32 v49, v44, v45")
    wave_scan(a, 49)
    a(f"v_mov_b32 v46, {RECL}")
    a("v_sub_u32 v51, v49, v45")
    a("v_sub_u32 v50, v51, v44")
    a("v_mad_u32_u24 v47, v51, 12, v46")
    a("v_mad_u32_u24 v46, v50, 12, v46")
    a(f"ds_write_b64 v42, v[46:47] offset:{START}")
    a("s_mov_b64 exec, s[38:39]")
    for j in range(4):
        a(f"ds_read_b32 v{20+j}, v{24+j} offset:{START}")
    if STAMP:
        a("s_waitcnt lgkmcnt(0)"); stamp(a, 4); a("s_waitcnt vmcnt(0) lgkmcnt(0)"); stamp(a, 5); a("s_waitcnt lgkmcnt(0)")
    a("s_waitcnt vmcnt(2)")
    for j in range(4):
        a(f"v_lshl_or_b32 v{32+j}, v{32+j}, 24, v{8+j}")
    a("s_waitcnt vmcnt(0)")
    for j in range(4):
        a(f"s_waitcnt lgkmcnt({min(3-j+2*j,15)})")
        a(f"v_mad_u32_u24 v{20+j}, v{28+j}, 12, v{20+j}")
        a(f"ds_write2_b32 v{20+j}, v{12+2*j}, v{13+2*j} offset0:0 offset1:1")
        a(f"ds_write_b32 v{20+j}, v{32+j} offset:8")
    a("s_mov_b64 exec, s[36:37]")
    a("v_lshl_or_b32 v52, v44, 16, v50")
    a("v_lshl_or_b32 v53, v45, 16, v51")
    a(f"buffer_store_dword v52, v54, s[24:27], s41 offen{ST}")
    a(f"buffer_store_dword v53, v54, s[24:27], s41 offen offset:1024{ST}")
    a("s_mov_b64 exec, -1")
    a("s_movk_i32 s41, 0x2000")
    a("s_movk_i32 s42, 0x4000")
    a("s_waitcnt lgkmcnt(0)")
    a("s_barrier")
    stamp(a, 6)
    if STAMP: a("s_waitcnt lgkmcnt(0)")
    for i in range(3):
        a(f"ds_read_b128 {vr(4+4*i,4)}, v1 offset:{RECL+8192*i}")
    so = ["0", "s41", "s42"]
    for i in range(3):
        a(f"s_waitcnt lgkmcnt({2-i})")
        a(f"buffer_store_dwordx4 {vr(4+4*i,4)}, v1, s[20:23], {so[i]} offen{ST}")
    if STAMP:
        stamp(a, 7)
        a("s_waitcnt vmcnt(0)")
        stamp(a, 8); stamp(a, 9)
        a("v_lshrrev_b32 v1, 6, v0")
        a("s_nop 1")
        a("v_readfirstlane_b32 s44, v1")
        a("s_nop 3")
        stamp_out(a, 10, 6, 44, 0x100000)
    a("K1_END:")
    a("s_endpgm")

DEN, NUM, ZERO, HIST, FLAG, START, AP, USTG, REC = 0, 25344, 50688, 50944, 51456, 51712, 52224, 77824, 92416
USTR = 144
K2_LDS = REC + 67840
ZEND = 51472
CAPT = 2112
KMAX = 9
NPF = int(OPT.get("pf", "1"))

def gen_k2(a):
    a("k2_kernel:")
    a("s_cmp_ge_u32 s2, 256")
    a("s_cbranch_scc1 K2_END")
    stamp(a, 0)
    a("s_load_dwordx2 s[46:47], s[0:1], 88")
    a("s_load_dwordx2 s[4:5], s[0:1], 0")
    a("s_load_dwordx2 s[6:7], s[0:1], 32")
    a("s_load_dwordx4 s[40:43], s[0:1], 48")
    a("s_load_dwordx2 s[44:45], s[0:1], 72")
    sWV, sSL, sBK = 36, 37, 38
    vl, vbase, vrem, XF, vt16, vOUT, vZ, v12c, vinc, vF, ID = 1, 2, 3, 4, 8, 9, 10, 11, 12, 13, 14
    G = [16, 28]
    T = [40, 48]
    H = [56, 64]
    AOP = 72
    IDX = 80
    APR = 84
    AAD = 88
    P_, D_, N_ = 92, 96, 100
    ACCD, ACCN = 104, 108
    NO, vrs, vra, vTL = 112, 113, 114, 115
    R = [18, 24, 30, 36, 92, 96, 100, 104, 108]
    t0, t1 = 13, 115
    vW, vX, vA = 113, 114, 112
    aB = [124, 125, 126, 127]
    XA, WB = 40, 56
    GA = [84, 88, 116, 120]
    HA = 40; S0 = 56; D0 = 68
    veff, vone = 116, 117
    WC = 84
    Z = 120
    a(f"v_and_b32 v{vbase}, -4, v0")
    a(f"v_lshrrev_b32 v{t0}, 6, v0")
    bucket_slice(a, sBK, sSL)
    a(f"v_readfirstlane_b32 s{sWV}, v{t0}")
    a(f"s_lshl_b32 s48, s{sBK}, 10")
    a(f"s_add_u32 s48, s48, {WS_OFF}")
    a(f"v_and_b32 v{vl}, 63, v0")
    gemm_dma_addrs(a, vl, vW, vX, t0, t1)
    a(f"s_mul_i32 s49, s{sSL}, {TS}")
    if WSB:
        a(f"s_add_u32 s49, s49, {WSB}")
    a(f"s_mul_i32 s50, s{sBK}, {NPB*256}")
    a(f"s_lshl_b32 s51, s{sSL}, 7")
    a(f"s_add_u32 s52, s50, s51")
    a(f"s_lshr_b32 s53, s{sWV}, 1")
    a(f"s_and_b32 s54, s{sWV}, 1")
    a(f"s_add_u32 s59, s50, {NPB*256}")
    a(f"s_min_u32 s59, s59, {N*256}")
    WL = REC; XL = REC + 32768
    a("s_lshl_b32 s55, s53, 12")
    a("s_waitcnt lgkmcnt(0)")
    srd(a, 32, 46, NCH * 4, add="s48")
    a(f"buffer_load_dword v{vrem}, v{vbase}, s[32:35], 0 offen")
    if OPT.get("b0") == "1":
        a("s_barrier")
    srd(a, 8, 4, "s59")
    a("s_cmp_eq_u32 s54, 0")
    a("s_cselect_b32 s6, s6, s42")
    a("s_cselect_b32 s7, s7, s43")
    srd(a, 12, 6, 32768)
    a("s_add_u32 s56, s55, s51")
    a("s_lshl_b32 s57, s53, 11")
    a("s_lshl_b32 s58, s54, 14")
    a("s_add_u32 s57, s57, s58")
    a(f"s_add_u32 s57, s57, {WL}")
    a("s_mov_b32 m0, s57")
    a(f"v_xor_b32 v{t0}, 64, v{vW}")
    a(f"buffer_load_dwordx4 v{vW}, s[12:15], s56 offen lds")
    a("s_add_u32 s57, s57, 1024")
    a("s_mov_b32 m0, s57")
    a("s_add_u32 s56, s56, 2048")
    a(f"buffer_load_dwordx4 v{t0}, s[12:15], s56 offen lds")
    a("s_lshl_b32 s58, s54, 11")
    a("s_add_u32 s56, s55, s58")
    a(f"s_add_u32 s57, s56, {XL}")
    a("s_add_u32 s56, s56, s50")
    a("s_lshl_b32 s58, s54, 7")
    a(f"v_xor_b32 v{t0}, s58, v{vX}")
    a(f"v_xor_b32 v{t1}, 64, v{t0}")
    a("s_mov_b32 m0, s57")
    a("s_add_u32 s57, s57, 1024")
    a(f"buffer_load_dwordx4 v{t0}, s[8:11], s56 offen lds")
    a("s_mov_b32 m0, s57")
    a("s_add_u32 s56, s56, 1024")
    a(f"buffer_load_dwordx4 v{t1}, s[8:11], s56 offen lds")
    srd(a, 16, 40, 1024)
    a(f"v_lshlrev_b32 v{t0}, 1, v{vl}")
    for m in range(4):
        a(f"buffer_load_ushort v{WC+m}, v{t0}, s[16:19], s51 offen offset:{256*m}")
    NV0 = 8
    if OPT.get("b0") == "2":
        a("s_barrier")
    srd(a, 28, 46, NCH * REC_STRIDE, add=hex(WS_REC))
    a(f"v_and_b32 v{t1}, 3, v0")
    a(f"v_mul_u32_u24 v{vbase}, {REC_STRIDE//4}, v{vbase}")
    a(f"v_mad_u32_u24 v{vbase}, v{t1}, 12, v{vbase}")
    a(f"v_lshlrev_b32 v{vt16}, 4, v0")
    for i in range(2):
        a(f"v_mov_b64 {vr(Z+2*i,2)}, 0")
    a(f"s_movk_i32 s58, {(ZEND-49152)//16}")
    a("v_cmp_gt_u32 vcc, s58, v0")
    for i in range(3):
        a(f"ds_write_b128 v{vt16}, {vr(Z,4)} offset:{16384*i}")
    a("s_mov_b64 exec, vcc")
    a(f"ds_write_b128 v{vt16}, {vr(Z,4)} offset:49152")
    a("s_mov_b64 exec, -1")
    a("s_mov_b32 s60, 0")
    a(f"s_waitcnt vmcnt({NV0})")
    stamp(a, 1)
    a(f"v_and_b32 v{t0}, 0xffff, v{vrem}")
    a(f"v_lshrrev_b32 v{vrem}, 16, v{vrem}")
    a(f"v_mad_u32_u24 v{vbase}, v{t0}, 12, v{vbase}")
    a(f"v_sub_u32 v{vrem}, v{vrem}, v{t1}")
    a("K2_ROUND:")
    for k in range(KMAX):
        a(f"v_cmpx_lt_i32 vcc, {4*k}, v{vrem}")
        a(f"buffer_load_dwordx3 {vr(R[k],3)}, v{vbase}, s[28:31], 0 offen offset:{48*k}")
    a("s_mov_b64 exec, -1")
    a("s_cmp_lg_u32 s60, 0")
    a("s_cbranch_scc1 K2_SETUPDONE")
    srd(a, 20, 44, N * 256)
    srd(a, 24, 46, (N + 1) * 256, add="s49", stride=256)
    gemm_read_addrs(a, vl, vA, aB[0], t0, t1)
    a(f"s_add_u32 s57, s55, {XL}")
    a(f"v_add_u32 v{vA}, s57, v{vA}")
    a("s_lshl_b32 s58, s54, 14")
    a(f"s_add_u32 s58, s58, {WL}")
    a(f"v_add_u32 v{aB[0]}, s58, v{aB[0]}")
    for q in range(1, 4):
        a(f"v_xor_b32 v{aB[q]}, {32*q}, v{aB[0]}")
    a(f"v_and_b32 v{t0}, 15, v{vl}")
    a(f"v_lshlrev_b32 v{IDX+1}, 4, v{t0}")
    a(f"v_mov_b32 v{IDX+3}, v{IDX+1}")
    a(f"v_mul_u32_u24 v{v12c}, 12, v{t0}")
    a(f"v_and_b32 v{t0}, 1, v{vl}")
    a(f"v_lshlrev_b32 v{t0}, 4, v{t0}")
    a("s_movk_i32 s58, 0x3f80")
    a(f"v_lshlrev_b32 v{t0}, v{t0}, s58")
    a(f"v_and_b32 v{t1}, 2, v{vl}")
    a(f"v_cmp_eq_u32 vcc, 0, v{t1}")
    a(f"v_lshrrev_b32 v{vW}, 4, v{vl}")
    a(f"v_bfe_u32 v{vX}, v{vl}, 2, 2")
    a(f"v_cndmask_b32 v{ID}, 0, v{t0}, vcc")
    a(f"v_cndmask_b32 v{ID+1}, v{t0}, 0, vcc")
    a(f"v_cmp_eq_u32 vcc, v{vW}, v{vX}")
    a(f"v_and_b32 v{t0}, 3, v{vl}")
    a(f"v_cmp_eq_u32 s[74:75], v{vW}, v{t0}")
    a(f"v_cndmask_b32 v{AOP+2}, 0, v{ID}, vcc")
    a(f"v_cndmask_b32 v{AOP+3}, 0, v{ID+1}, vcc")
    a(f"v_mov_b32 v{t0}, 0x80")
    a(f"v_mov_b32 v{AOP+6}, v{AOP+2}")
    a(f"v_mov_b32 v{AOP+7}, v{AOP+3}")
    a(f"v_cndmask_b32 v{vinc}, 0, v{t0}, s[74:75]")
    a(f"v_mov_b32 v{vZ}, {ZERO}")
    a(f"s_mov_b32 s66, {f32(2.0**-SHIFT)}")
    a("s_mov_b32 s67, s66")
    a(f"v_lshrrev_b32 v{t0}, 3, v0")
    a(f"v_and_b32 v{t1}, 7, v0")
    a(f"v_lshlrev_b32 v{vOUT}, 4, v{t1}")
    a(f"v_lshl_or_b32 v{vOUT}, v{t0}, 8, v{vOUT}")
    a(f"s_lshl_b32 s58, s{sSL}, 3")
    a(f"v_or_b32 v{t1}, s58, v{t1}")
    a(f"v_and_b32 v{XF}, 15, v{t0}")
    a(f"v_xor_b32 v{t1}, v{t1}, v{XF}")
    a(f"v_lshlrev_b32 v{t1}, 4, v{t1}")
    a(f"v_lshl_or_b32 v{XF}, v{t0}, 8, v{t1}")
    a(f"v_add_u32 v{XF}, {XL}, v{XF}")
    a(f"s_mov_b32 s58, {f32(-LOG2E)}")
    a(f"s_waitcnt vmcnt({KMAX})")
    for m in range(4):
        a(f"v_lshlrev_b32 v{WC+m}, 16, v{WC+m}")
        a(f"v_mul_f32 v{WC+m}, s58, v{WC+m}")
    a(f"v_cvt_pk_bf16_f32 v{G[0]}, v{WC}, v{WC+1}")
    a(f"v_cvt_pk_bf16_f32 v{G[0]+1}, v{WC+2}, v{WC+3}")
    for o in (G[0] + 6, G[1], G[1] + 6):
        a(f"v_mov_b64 {vr(o,2)}, {vr(G[0],2)}")
    a("K2_SETUPDONE:")
    PFPOS = OPT.get("pfpos", "rank")
    def prefetch():
        if not NPF:
            return
        a("s_lshr_b32 s58, s2, 3")
        a(f"s_mul_i32 s58, s58, {391*256}")
        a("s_add_u32 s58, s58, s49")
        srd(a, 16, 46, 391 * 256, add="s58")
        a(f"v_lshlrev_b32 v{vX}, {OPT.get('pfsh', '6')}, v0")
        a("s_mov_b32 s58, 0x10000")
        for i in range(NPF):
            a(f"buffer_load_dword v{vTL}, v{vX}, s[16:19], {'s58' if i else '0'} offen")
    if PFPOS == "early":
        prefetch()
    a(f"s_waitcnt lgkmcnt(0)")
    a("s_barrier")
    stamp(a, 2)
    if STAMP: a("s_waitcnt lgkmcnt(0)")
    a("s_cmp_lg_u32 s60, 0")
    a("s_cbranch_scc1 K2_NOGEMM")
    a(f"ds_read_b128 {vr(XF,4)}, v{XF}")
    a(f"s_cmp_ge_u32 s{sWV}, 14")
    a("s_cbranch_scc1 K2_NOGEMM")
    a(f"ds_read_b128 {vr(XA,4)}, v{vA}")
    for st in range(1, 4):
        a(f"v_xor_b32 v{t0}, {64*st}, v{vA}")
        a(f"ds_read_b128 {vr(XA+4*st,4)}, v{t0}")
    def wrd(st, q):
        for u in range(2):
            a(f"ds_read_b64_tr_b16 {vr(WB+4*q+2*u,2)}, v{aB[q]} offset:{st*4096+u*512}")
    for q in range(4):
        wrd(0, q)
    a(f"v_lshrrev_b32 v{t0}, 4, v{vl}")
    a(f"v_and_b32 v{vW}, 15, v{vl}")
    a("s_cmp_eq_u32 s54, 0")
    a("s_cbranch_scc0 K2_GEMMU")
    def chain(swap):
        for st in range(4):
            for q in range(4):
                a(f"s_waitcnt lgkmcnt({6 if st < 3 else 6-2*q})")
                c = "0" if st == 0 else vr(GA[q], 4)
                x, w = vr(XA+4*st, 4), vr(WB+4*q, 4)
                a(f"v_mfma_f32_16x16x32_bf16 {vr(GA[q],4)}, {w if swap else x}, {x if swap else w}, {c}")
                if st < 3:
                    a("s_nop 0")
                    wrd(st + 1, q)
    chain(False)
    a(f"v_lshlrev_b32 v{vW}, 4, v{vW}")
    a(f"v_lshl_or_b32 v{t0}, v{t0}, 10, v{vW}")
    a(f"v_add_u32 v{t0}, s55, v{t0}")
    a(f"s_mov_b32 s58, {f32(-LOG2E)}")
    a(f"v_mov_b32 v{vW}, {f32(-float(SHIFT))}")
    a("s_cmp_eq_u32 s53, 6")
    a("s_cselect_b32 s56, 0xffff, -1")
    a("s_cselect_b32 s57, 0, -1")
    a("s_mov_b64 exec, s[56:57]")
    for r in range(4):
        for q in range(4):
            a(f"v_fma_f32 v{XA+4*r+q}, v{GA[q]+r}, s58, v{vW}")
        a(f"ds_write_b128 v{t0}, {vr(XA+4*r,4)} offset:{AP+256*r}")
    a("s_branch K2_GEMMDONE")
    a("K2_GEMMU:")
    chain(True)
    a(f"v_mul_u32_u24 v{vW}, {USTR}, v{vW}")
    a(f"v_lshl_add_u32 v{t0}, v{t0}, 3, v{vW}")
    a(f"s_mul_i32 s58, s53, {16*USTR}")
    a(f"s_add_u32 s58, s58, {USTG}")
    a(f"v_add_u32 v{t0}, s58, v{t0}")
    a("s_cmp_eq_u32 s53, 6")
    a("s_cselect_b32 s56, 0x000f000f, -1")
    a("s_mov_b32 s57, s56")
    a("s_mov_b64 exec, s[56:57]")
    for q in range(4):
        a(f"v_cvt_pk_bf16_f32 v{XA+2*q}, v{GA[q]}, v{GA[q]+1}")
        a(f"v_cvt_pk_bf16_f32 v{XA+2*q+1}, v{GA[q]+2}, v{GA[q]+3}")
        a(f"ds_write_b64 v{t0}, {vr(XA+2*q,2)} offset:{32*q}")
    a("K2_GEMMDONE:")
    a("s_mov_b64 exec, -1")
    a("K2_NOGEMM:")
    stamp(a, 3)
    a(f"s_mov_b32 s61, {4*KMAX}")
    a(f"v_mov_b32 v{vone}, 1")
    a("K2_RANK:")
    a("s_sub_u32 s58, s61, 3")
    a(f"v_min_i32 v{veff}, s58, v{vrem}")
    a(f"v_cmpx_lt_i32 vcc, s61, v{vrem}")
    a("s_cbranch_execz K2_NOFLAG")
    a(f"v_mov_b32 v{t0}, {FLAG}")
    a(f"ds_write_b32 v{t0}, v{vone}")
    a("K2_NOFLAG:")
    a("s_mov_b64 exec, -1")
    for k in range(KMAX):
        a(f"v_cmpx_lt_i32 vcc, {4*k}, v{veff}")
        if k >= 4:
            a("s_cbranch_execz K2_RANKED")
        a(f"s_waitcnt vmcnt({KMAX-1-k+(NPF if PFPOS == 'early' else 0)})")
        a(f"v_lshrrev_b32 v{HA+k}, 22, v{R[k]+2}")
        a(f"ds_add_rtn_u32 v{R[k]+3}, v{HA+k}, v{vone} offset:{HIST}")
    a("K2_RANKED:")
    a("s_mov_b64 exec, -1")
    if PFPOS == "rank":
        prefetch()
    a(f"v_lshlrev_b32 v{t0}, 3, v{vl}")
    a(f"v_mov_b32 v{vW}, {FLAG}")
    a(f"v_mov_b64 {vr(D0,2)}, 0")
    a(f"v_mov_b32 v{D0+2}, {N | (NPB << 24)}")
    a("s_waitcnt lgkmcnt(0)")
    a("s_barrier")
    stamp(a, 4)
    if STAMP: a("s_waitcnt lgkmcnt(0)")
    a(f"ds_read_b64 {vr(S0,2)}, v{t0} offset:{HIST}")
    a(f"ds_read_b32 v{S0+2}, v{vW}")
    if PFPOS == "b2":
        prefetch()
    a("s_waitcnt lgkmcnt(1)")
    a(f"v_add_u32 v{S0+4}, 1, v{S0}")
    a(f"v_add_u32 v{S0+5}, 1, v{S0+1}")
    a(f"v_lshrrev_b32 v{S0+4}, 1, v{S0+4}")
    a(f"v_lshrrev_b32 v{S0+5}, 1, v{S0+5}")
    a(f"v_add_u32 v{S0+7}, v{S0+4}, v{S0+5}")
    wave_scan(a, S0 + 7)
    a(f"s_mov_b32 s58, {REC}")
    a(f"v_sub_u32 v{S0+9}, v{S0+7}, v{S0+5}")
    a(f"v_readlane_b32 s62, v{S0+7}, 63")
    a(f"v_sub_u32 v{S0+8}, v{S0+9}, v{S0+4}")
    a(f"v_lshl_add_u32 v{S0+9}, v{S0+9}, 5, s58")
    a(f"v_lshl_add_u32 v{S0+8}, v{S0+8}, 5, s58")
    a(f"s_cmp_le_u32 s62, {CAPT}")
    a("s_cbranch_scc0 K2_TOOMANY")
    a(f"ds_write_b64 v{t0}, {vr(S0+8,2)} offset:{START}")
    for k in range(KMAX):
        a(f"v_cmpx_lt_i32 vcc, {4*k}, v{veff}")
        if k >= 4:
            a("s_cbranch_execz K2_STARTED")
        a(f"ds_read_b32 v{HA+k}, v{HA+k} offset:{START}")
    a("K2_STARTED:")
    a("s_mov_b64 exec, -1")
    a("s_add_u32 s64, s62, 63")
    a("s_lshr_b32 s64, s64, 6")
    a("s_max_u32 s64, s64, 16")
    a("s_lshl_b32 s58, s64, 6")
    a("s_add_u32 s58, s58, 4")
    a("s_sub_u32 s58, s58, s62")
    a("s_lshl_b32 s58, s58, 1")
    a(f"s_lshl_b32 s59, s{sWV}, 6")
    a("s_cmp_le_u32 s58, s59")
    a("s_cbranch_scc1 K2_FILLED")
    a("s_lshl_b32 s59, s62, 5")
    a(f"s_add_u32 s59, s59, {REC}")
    a(f"v_add_u32 v{D0+4}, s59, v{vt16}")
    a(f"v_sub_u32 v{D0+5}, s58, v0")
    for i in range(3):
        a(f"v_cmpx_lt_i32 vcc, 0, v{D0+5}")
        a(f"ds_write_b96 v{D0+4}, {vr(D0,3)} offset:{16384*i}")
        a(f"v_subrev_u32 v{D0+5}, 0x400, v{D0+5}")
    a("s_mov_b64 exec, -1")
    a("K2_FILLED:")
    a(f"s_cmp_lt_u32 s{sWV}, 15")
    a("s_cbranch_scc1 K2_NODUMMY")
    for h in range(2):
        a(f"v_lshlrev_b32 v{D0+2}, 25, v{vl}")
        a(f"v_or_b32 v{D0+2}, {N | (h << 24)}, v{D0+2}")
        a(f"v_lshl_add_u32 v{D0+4}, v{S0+h}, 4, v{S0+8+h}")
        a(f"v_and_b32 v{D0+5}, 1, v{S0+h}")
        a(f"v_cmpx_eq_u32 vcc, 1, v{D0+5}")
        a(f"ds_write_b96 v{D0+4}, {vr(D0,3)}")
        a("s_mov_b64 exec, -1")
        a("s_nop 0")
    a("K2_NODUMMY:")
    a(f"s_lshl_b32 s58, s64, 5")
    a(f"s_lshl_b32 s59, s{sWV}, 2")
    a("s_mul_i32 s59, s59, s58")
    a(f"s_add_u32 s59, s59, {REC}")
    a(f"v_lshrrev_b32 v{vrs}, 4, v{vl}")
    a(f"v_bfe_u32 v{vra}, v{vl}, 2, 2")
    a(f"v_mov_b32 v{t0}, s59")
    a(f"v_mad_u32_u24 v{vrs}, v{vrs}, s58, v{t0}")
    a(f"v_mad_u32_u24 v{vra}, v{vra}, s58, v{t0}")
    a(f"v_lshrrev_b32 v{t0}, 2, v{IDX+1}")
    a(f"v_cndmask_b32 v{vra}, v{vZ}, v{vra}, s[74:75]")
    a("s_waitcnt lgkmcnt(0)")
    a(f"v_readfirstlane_b32 s63, v{S0+2}")
    for k in range(KMAX):
        a(f"v_cmpx_lt_i32 vcc, {4*k}, v{veff}")
        if k >= 4:
            a("s_cbranch_execz K2_SCATTERED")
        a(f"v_lshl_add_u32 v{HA+k}, v{R[k]+3}, 4, v{HA+k}")
        a(f"ds_write_b96 v{HA+k}, {vr(R[k],3)}")
    a("K2_SCATTERED:")
    a("s_mov_b64 exec, -1")
    a("s_waitcnt vmcnt(0) lgkmcnt(0)" if OPT.get("pfwait") else "s_waitcnt lgkmcnt(0)")
    a("s_barrier")
    stamp(a, 5)
    if STAMP: a("s_waitcnt lgkmcnt(0)")

    def gload(st):
        g = G[st & 1]
        if OPT.get("nogather"):
            return
        a(f"buffer_load_dwordx4 {vr(g+2,4)}, {vr(IDX,2)}, s[24:27], 0 idxen offen")
        a(f"buffer_load_dwordx4 {vr(g+8,4)}, {vr(IDX+2,2)}, s[24:27], 0 idxen offen")
    def rd_idx(p):
        a(f"ds_read_u16 v{IDX}, v{vrs} offset:{32*p+8}")
        a(f"ds_read_u16 v{IDX+2}, v{vrs} offset:{32*p+24}")
    def rd_no(p, dst=NO):
        a(f"ds_read_u16 v{dst}, v{vrs} offset:{32*p+10}")
    def rd_a(p, aad):
        a(f"ds_read_b128 {vr(APR,4)}, v{aad} offset:{AP}")
        a(f"ds_read_b64 {vr(AOP,2)}, v{vra} offset:{32*p}")
        a(f"ds_read_b64 {vr(AOP+4,2)}, v{vra} offset:{32*p+16}")
    def mf(st):
        g, t, h = G[st & 1], T[st & 1], H[st & 1]
        return [f"v_mfma_f32_16x16x32_bf16 {vr(t,4)}, {vr(AOP,4)}, {vr(g,4)}, {vr(APR,4)}",
                f"v_mfma_f32_16x16x32_bf16 {vr(t+4,4)}, {vr(AOP+4,4)}, {vr(g+6,4)}, {vr(APR,4)}",
                f"v_mfma_f32_4x4x4_16b_bf16 {vr(h,4)}, {vr(ID,2)}, {vr(g+4,2)}, 0",
                f"v_mfma_f32_4x4x4_16b_bf16 {vr(h+4,4)}, {vr(ID,2)}, {vr(g+10,2)}, 0"]
    MK = [68, 70]
    rd_idx(0)
    rd_no(0, AAD)
    rd_no(1, AAD + 1)
    for i in range(4):
        a(f"v_mov_b64 {vr(ACCD+2*i,2)}, 0")
    a("s_waitcnt lgkmcnt(2)")
    gload(0)
    rd_idx(1)
    a("s_waitcnt lgkmcnt(2)")
    a(f"v_add_u32 v{AAD}, v{AAD}, v{IDX+1}")
    a(f"v_add_u32 v{AAD+1}, v{AAD+1}, v{IDX+1}")
    a("s_waitcnt lgkmcnt(0)")
    gload(1)
    rd_a(0, AAD)
    rd_idx(2)
    a(f"v_cmp_ne_u32 s[{MK[0]}:{MK[0]+1}], v{AAD}, v{AAD+1}")
    a("s_waitcnt vmcnt(2) lgkmcnt(0)")
    a(f"v_add_u32 v{vTL}, v{t0}, v{vrs}")
    for m in mf(0):
        a(m)
    gload(2)
    a("s_nop 1")
    rd_a(1, AAD + 1)
    rd_idx(3)
    rd_no(2)
    a("s_mov_b32 s65, s64")
    stamp(a, 6)
    if STAMP: a("s_waitcnt lgkmcnt(0)")
    prio = OPT.get("prio", "16:8:4")
    if prio != "0":
        a("s_setprio 3")
    a(".p2align 5")
    a("K2_LOOP:")
    if prio != "0":
        th = [int(x) for x in prio.split(":")]
        for lvl, x in zip((2, 1, 0), th):
            a(f"s_cmp_gt_u32 s65, {x}")
            a("s_cbranch_scc1 K2_PRIO")
            a(f"s_setprio {lvl}")
        a("K2_PRIO:")
    def pk(op, d, x, y, z=None):
        for i in (0, 2):
            if z is None:
                a(f"v_pk_{op}_f32 {vr(d+i,2)}, {vr(x+i,2)}, {vr(y+i,2)}")
            else:
                a(f"v_pk_{op}_f32 {vr(d+i,2)}, {vr(x+i,2)}, {vr(y+i,2)}, {vr(z+i,2)}")
    for j in range(4):
        t, h = T[j & 1], H[j & 1]
        e = [f"v_exp_f32_e64 v{t+i}, v{t+i} clamp" for i in range(8)]
        m = mf(j + 1)
        a("s_waitcnt vmcnt(2) lgkmcnt(3)")
        for x in (e[0], m[0], e[1], m[1], e[2], m[2], e[3], m[3], e[4]):
            a(x)
        a("s_cmp_gt_u32 s65, 3")
        a("s_waitcnt lgkmcnt(0)")
        a(f"s_cbranch_scc0 K2_SKIP{j}")
        gload(j + 1)
        a(f"K2_BACK{j}:")
        a(e[5])
        a(f"v_add_u32 v{AAD+(j+2)%4}, v{NO}, v{IDX+1}")
        a(e[6])
        rd_a(j + 2, AAD + (j + 2) % 4)
        rd_idx(j + 4)
        rd_no(j + 3)
        a(e[7])
        mk = MK[(j + 1) & 1]
        a(f"v_cmp_ne_u32 s[{mk}:{mk+1}], v{AAD+(j+1)%4}, v{AAD+(j+2)%4}")
        for i in range(4):
            a(f"v_pk_add_f32 {vr(t+2*i,2)}, {vr(t+2*i,2)}, s[66:67]")
        pk("mul", P_, t, t + 4)
        pk("add", D_, t, t + 4)
        pk("mul", N_, h, t + 4)
        for i in range(4):
            a(f"v_rcp_f32 v{P_+i}, v{P_+i}")
        pk("fma", N_, h + 4, t, N_)
        if j == 3:
            a(f"v_add_u32 v{vrs}, 0x80, v{vrs}")
            a(f"v_add_u32 v{vra}, v{vinc}, v{vra}")
        pk("fma", ACCD, D_, P_, ACCD)
        pk("fma", ACCN, N_, P_, ACCN)
        a("s_sub_u32 s65, s65, 1")
        a("s_cmp_eq_u32 s65, 0")
        a(f"s_cbranch_scc1 K2_MAINDONE")
        mk = MK[j & 1]
        a(f"s_cmp_lg_u64 s[{mk}:{mk+1}], 0")
        if not OPT.get("noflush"):
            a(f"s_cbranch_scc1 K2_FLUSH{j}")
        if j == 3:
            a("s_branch K2_LOOP")
        else:
            a(f"K2_FBACK{j}:")
    for j in range(4):
        a(f"K2_SKIP{j}:")
        a("s_waitcnt vmcnt(0)")
        a(f"s_branch K2_BACK{j}")
        a(f"K2_FLUSH{j}:")
        mk = MK[j & 1]
        a(f"s_mov_b64 exec, s[{mk}:{mk+1}]")
        a(f"v_sub_u32 v{vF}, v{AAD+j}, v{v12c}")
        for q in range(4):
            a(f"ds_write_b32 v{vF}, v{ACCD+q} offset:{DEN+64*q}")
        for q in range(4):
            a(f"ds_write_b32 v{vF}, v{ACCN+q} offset:{NUM+64*q}")
        a(f"ds_read_b128 {vr(ACCD,4)}, v{vZ}")
        a(f"ds_read_b128 {vr(ACCN,4)}, v{vZ}")
        a("s_mov_b64 exec, -1")
        a("s_branch K2_LOOP" if j == 3 else f"s_branch K2_FBACK{j}")
    a("K2_TOOMANY:")
    a("s_cmp_eq_u32 s61, 16")
    a("s_cbranch_scc1 K2_END")
    a("s_waitcnt lgkmcnt(0)")
    a("s_barrier")
    a("s_movk_i32 s58, 33")
    a("v_cmp_gt_u32 vcc, s58, v0")
    for i in range(2):
        a(f"v_mov_b64 {vr(Z+2*i,2)}, 0")
    a("s_mov_b64 exec, vcc")
    a(f"ds_write_b128 v{vt16}, {vr(Z,4)} offset:{HIST}")
    a("s_mov_b64 exec, -1")
    a("s_mov_b32 s61, 16")
    a("s_waitcnt lgkmcnt(0)")
    a("s_barrier")
    a("s_branch K2_RANK")
    a("K2_MAINDONE:")
    stamp(a, 7)
    a("s_waitcnt lgkmcnt(0)")
    for q in range(4):
        a(f"ds_write_b32 v{vTL}, v{ACCD+q} offset:{64*q}")
    for q in range(4):
        a(f"ds_write_b32 v{vTL}, v{ACCN+q} offset:{256+64*q}")
    FD, FN, FU, TD, XU = 40, 48, 56, 92, 60
    UU = 116
    f0, f1, f2, f3, f4, f5 = 84, 86, 87, 88, 89, 90
    a(f"v_lshrrev_b32 v{t0}, 3, v0")
    a(f"v_lshlrev_b32 v{f0}, 2, v{t0}")
    a(f"v_add_u32 v{f0}, {START}, v{f0}")
    a(f"ds_read2_b32 {vr(f1,2)}, v{f0} offset0:0 offset1:1")
    a(f"v_and_b32 v{f3}, 7, v0")
    a(f"v_mul_u32_u24 v{f4}, {USTR}, v{t0}")
    a(f"v_lshl_add_u32 v{f4}, v{f3}, 4, v{f4}")
    a(f"v_add_u32 v{f4}, {USTG}, v{f4}")
    a(f"v_min_u32 v{f4}, {USTG + 99*USTR}, v{f4}")
    a(f"ds_read_b128 {vr(FU,4)}, v{f4}")
    a(f"v_cvt_f32_u32 v{f5}, s64")
    a(f"v_rcp_f32 v{f5}, v{f5}")
    a(f"s_movk_i32 s58, {NPB*8}")
    a("v_cmp_gt_u32 vcc, s58, v0")
    a(f"v_mul_f32 v{f5}, {f32(2.0**20)}, v{f5}")
    a(f"v_cvt_u32_f32 v{f5}, v{f5}")
    a(f"v_add_u32 v{f5}, 1, v{f5}")
    a(f"v_lshlrev_b32 v{f3}, 5, v{f3}")
    a(f"v_lshl_or_b32 v{f0}, v{t0}, 8, v{f3}")
    a("s_lshl_b32 s59, s64, 5")
    for i in range(4):
        a(f"v_lshlrev_b32 v{XU+2*i}, 16, v{XF+i}")
        a(f"v_and_b32 v{XU+2*i+1}, 0xffff0000, v{XF+i}")
    a("s_waitcnt lgkmcnt(1)")
    for i in range(2):
        a(f"v_subrev_u32 v{f1+i}, {REC}, v{f1+i}")
        a(f"v_lshrrev_b32 v{f1+i}, 5, v{f1+i}")
        a(f"v_mul_u32_u24 v{f1+i}, v{f1+i}, v{f5}")
        a(f"v_lshrrev_b32 v{f1+i}, 20, v{f1+i}")
    a(f"v_sub_u32 v{f2}, v{f2}, v{f1}")
    a(f"v_mad_u32_u24 v{f1}, v{f1}, s59, v{f3}")
    a(f"v_add_u32 v{f1}, {REC}, v{f1}")
    a("s_waitcnt lgkmcnt(0)")
    for i in range(4):
        a(f"v_lshlrev_b32 v{UU+2*i}, 16, v{FU+i}")
        a(f"v_and_b32 v{UU+2*i+1}, 0xffff0000, v{FU+i}")
    a(f"s_mov_b32 s56, {f32(1e-6 * 2.0**SHIFT)}")
    a("s_mov_b32 s57, s56")
    a("s_mov_b64 s[68:69], vcc")
    a("s_waitcnt vmcnt(0)")
    a("s_barrier")
    stamp(a, 8)
    if STAMP: a("s_waitcnt lgkmcnt(0)")
    a("s_mov_b64 exec, vcc")
    a(f"ds_read_b128 {vr(FD,4)}, v{f0} offset:{DEN}")
    a(f"ds_read_b128 {vr(FD+4,4)}, v{f0} offset:{DEN+16}")
    a(f"ds_read_b128 {vr(FN,4)}, v{f0} offset:{NUM}")
    a(f"ds_read_b128 {vr(FN+4,4)}, v{f0} offset:{NUM+16}")
    a("K2_TAILS:")
    a(f"v_cmpx_lt_i32 vcc, 0, v{f2}")
    a("s_cbranch_execz K2_TAILSDONE")
    a(f"ds_read_b128 {vr(TD,4)}, v{f1}")
    a(f"ds_read_b128 {vr(TD+4,4)}, v{f1} offset:16")
    a(f"ds_read_b128 {vr(TD+8,4)}, v{f1} offset:256")
    a(f"ds_read_b128 {vr(TD+12,4)}, v{f1} offset:272")
    a(f"v_add_u32 v{f1}, s59, v{f1}")
    a(f"v_subrev_u32 v{f2}, 1, v{f2}")
    for i in range(8):
        if i % 2 == 0:
            a(f"s_waitcnt lgkmcnt({3 - i//2})")
        a(f"v_pk_add_f32 {vr(FD+2*i,2)}, {vr(FD+2*i,2)}, {vr(TD+2*i,2)}")
    a("s_branch K2_TAILS")
    a("K2_TAILSDONE:")
    a("s_mov_b64 exec, s[68:69]")
    a("s_or_b32 s58, s60, s63")
    a("s_cmp_lg_u32 s58, 0")
    a("s_cbranch_scc1 K2_MULTI")
    a("K2_FINAL:")
    a("s_waitcnt lgkmcnt(2)")
    for i in range(4):
        a(f"v_pk_add_f32 {vr(FD+2*i,2)}, {vr(FD+2*i,2)}, s[56:57]")
    for i in range(8):
        a(f"v_rcp_f32 v{FD+i}, v{FD+i}")
    a("s_waitcnt lgkmcnt(0)")
    for i in range(4):
        a(f"v_pk_fma_f32 {vr(UU+2*i,2)}, {vr(FN+2*i,2)}, {vr(FD+2*i,2)}, {vr(UU+2*i,2)}")
    for i in range(8):
        a(f"v_max_f32 v{UU+i}, 0, v{UU+i}")
    for i in range(4):
        a(f"v_pk_add_f32 {vr(XU+2*i,2)}, {vr(XU+2*i,2)}, {vr(UU+2*i,2)}")
    for i in range(4):
        a(f"v_cvt_pk_bf16_f32 v{FD+i}, v{XU+2*i}, v{XU+2*i+1}")
    a(f"buffer_store_dwordx4 {vr(FD,4)}, v{vOUT}, s[20:23], s52 offen{' sc1' if OPT.get('outsc1') else ''}")
    stamp(a, 9)
    stamp_out(a, 10, 46, sWV, 0)
    a("K2_END:")
    a("s_endpgm")
    a("K2_MULTI:")
    a("s_lshl_b32 s58, s2, 16")
    a(f"s_add_u32 s58, s58, {WS_SPILL}")
    srd(a, 32, 46, 65536, add="s58")
    a(f"v_lshlrev_b32 v{f3}, 2, v{vt16}")
    a("s_waitcnt lgkmcnt(0)")
    a("s_cmp_eq_u32 s60, 0")
    a("s_cbranch_scc1 K2_NOSPILLIN")
    for i in range(4):
        a(f"buffer_load_dwordx4 {vr(TD+4*i,4)}, v{f3}, s[32:35], 0 offen offset:{16*i} sc1")
    a("s_waitcnt vmcnt(0)")
    for i in range(8):
        a(f"v_pk_add_f32 {vr(FD+2*i,2)}, {vr(FD+2*i,2)}, {vr(TD+2*i,2)}")
    a("K2_NOSPILLIN:")
    a("s_cmp_eq_u32 s63, 0")
    a("s_cbranch_scc1 K2_FINAL")
    for i in range(4):
        a(f"buffer_store_dwordx4 {vr(FD+4*i,4)}, v{f3}, s[32:35], 0 offen offset:{16*i} sc1")
    a("s_mov_b64 exec, -1")
    for i in range(2):
        a(f"v_mov_b64 {vr(Z+2*i,2)}, 0")
    a("s_movk_i32 s58, 33")
    a("v_cmp_gt_u32 vcc, s58, v0")
    a("s_mov_b64 exec, s[68:69]")
    for o in (DEN, DEN + 16, NUM, NUM + 16):
        a(f"ds_write_b128 v{f0}, {vr(Z,4)} offset:{o}")
    a("s_mov_b64 exec, vcc")
    a(f"ds_write_b128 v{vt16}, {vr(Z,4)} offset:{HIST}")
    a("s_mov_b64 exec, -1")
    a(f"v_subrev_u32 v{vrem}, s61, v{vrem}")
    a("s_mul_i32 s58, s61, 12")
    a(f"v_add_u32 v{vbase}, s58, v{vbase}")
    a("s_add_u32 s60, s60, 1")
    a("s_setprio 0")
    a("s_waitcnt vmcnt(0)")
    a("s_cmp_le_u32 s60, 128")
    a("s_cbranch_scc1 K2_ROUND")
    a("s_endpgm")

HEADER = """; GatedGCN message passing, two launches.
"""

def descriptor(name, vgpr, sgpr):
    return f""".p2align 6
.amdhsa_kernel {name}
  .amdhsa_next_free_vgpr {vgpr}
  .amdhsa_next_free_sgpr {sgpr}
  .amdhsa_accum_offset {(vgpr+3)//4*4}
  .amdhsa_group_segment_fixed_size 0
  .amdhsa_kernarg_size 96
  .amdhsa_user_sgpr_count 2
  .amdhsa_user_sgpr_kernarg_segment_ptr 1
  .amdhsa_system_sgpr_workgroup_id_x 1
  .amdhsa_float_denorm_mode_32 3
.end_amdhsa_kernel
"""

def main():
    out = HEADER
    out += f"; @launch kernel=k1_kernel grid=(512,1,1) block=(512,1,1) lds=65536\n"
    out += f"; @launch kernel=k2_kernel grid=(256,1,1) block=(1024,1,1) lds={K2_LDS}\n"
    out += '.amdgcn_target "amdgcn-amd-amdhsa--gfx950"\n.text\n'
    for name, g in (("k1_kernel", gen_k1), ("k2_kernel", gen_k2)):
        a = A()
        g(a)
        out += f".globl {name}\n.p2align 8\n.type {name},@function\n" + a.text()
    out += '.section .rodata,"a"\n'
    out += descriptor("k1_kernel", 100, 102 if (STAMP or DBG) else 64)
    out += descriptor("k2_kernel", 128, 102 if (STAMP or DBG) else 80)
    path = sys.argv[1] if len(sys.argv) > 1 else "standalone__edge_featured_mpnn_gatedgcn__graph.s"
    open(path, "w").write(out)

main()
```

```python
import sys, struct

N = 12500
E = 400000
NPB = 98
NBK = 128
NCH = 250
CHE = 1600
NGEMM = 256
import os
WSB = int(os.environ.get("WSB", "0"), 0)
TS = 0x310000
WS_REC = WSB + 0x800000
REC_STRIDE = 19200
WS_OFF = WSB + 0x1000000
WS_SPILL = 0x4000000
LOG2E = 1.4426950408889634
SHIFT = 40

def f32(x):
    return "0x%08x" % struct.unpack("<I", struct.pack("<f", x))[0]

import os
STAMP = os.environ.get("STAMP") == "1"
OPT = dict(kv.split("=") for kv in os.environ.get("OPT", "").split(",") if kv)
WS_STAMP = 0x2000000
def stamp(a, i):
    if STAMP:
        a(f"s_memtime s[{80+2*i}:{81+2*i}]")
        if i == 0:
            a("s_memrealtime s[100:101]")
def stamp_out(a, n, wsptr, wave_sreg, base):
    if not STAMP:
        return
    a("s_memrealtime s[78:79]")
    a("s_waitcnt vmcnt(0) lgkmcnt(0)")
    a("s_mov_b64 exec, 1")
    srd(a, 72, wsptr, 1 << 20, add=hex(WS_STAMP + base))
    a(f"s_lshl_b32 s76, s2, 4")
    a(f"s_add_u32 s76, s76, s{wave_sreg}")
    a(f"s_lshl_b32 s76, s76, 6")
    a("v_mov_b32 v1, s76")
    for i in range(n):
        a(f"v_mov_b32 v2, s{80+2*i}")
        a(f"buffer_store_dword v2, v1, s[72:75], 0 offen offset:{4*i}")
        a("s_nop 1")
    a("v_mov_b32 v2, s100")
    a(f"buffer_store_dword v2, v1, s[72:75], 0 offen offset:56")
    a("s_nop 1")
    a("v_mov_b32 v2, s78")
    a(f"buffer_store_dword v2, v1, s[72:75], 0 offen offset:60")
    a("s_waitcnt vmcnt(0)")

DBG = os.environ.get("DBG") == "1"
def dbg_start(a):
    if DBG:
        a("s_memrealtime s[100:101]")
        a("s_memtime s[98:99]")
        a("s_load_dwordx2 s[96:97], s[0:1], 80")
def dbg_end(a, kid):
    if not DBG:
        return
    a("s_waitcnt vmcnt(0) lgkmcnt(0)")
    a("s_memrealtime s[94:95]")
    a("s_memtime s[92:93]")
    a("s_waitcnt lgkmcnt(0)")
    a("s_mov_b64 exec, 1")
    srd(a, 72, 96, 256)
    a("s_not_b32 s100, s100")
    a("s_sub_u32 s92, s92, s98")
    a("v_mov_b32 v1, 0")
    a(f"v_mov_b32 v2, {kid}")
    a("v_mov_b32 v3, s100")
    a("v_mov_b32 v4, s94")
    a("v_mov_b32 v5, s92")
    a("buffer_atomic_umax v2, v1, s[72:75], 0 offen")
    a("buffer_atomic_umax v3, v1, s[72:75], 0 offen offset:4")
    a("buffer_atomic_umax v4, v1, s[72:75], 0 offen offset:8")
    a("buffer_atomic_umax v5, v1, s[72:75], 0 offen offset:12")
    a("s_waitcnt vmcnt(0)")

class A:
    def __init__(self):
        self.l = []
    def __call__(self, s=""):
        for line in s.split("\n"):
            line = line.strip()
            if not line:
                continue
            if line.endswith(":"):
                self.l.append(line)
            else:
                self.l.append("    " + line)
    def text(self):
        return "\n".join(self.l) + "\n"

def vr(b, n):
    return f"v[{b}:{b+n-1}]" if n > 1 else f"v{b}"
def sr(b, n):
    return f"s[{b}:{b+n-1}]" if n > 1 else f"s{b}"

def srd(a, d, ptr, size, add=None, stride=0):
    if add is None:
        a(f"s_mov_b32 s{d}, s{ptr}")
        a(f"s_and_b32 s{d+1}, s{ptr+1}, 0xffff")
    else:
        a(f"s_add_u32 s{d}, s{ptr}, {add}")
        a(f"s_addc_u32 s{d+1}, s{ptr+1}, 0")
        a(f"s_and_b32 s{d+1}, s{d+1}, 0xffff")
    if stride:
        a(f"s_or_b32 s{d+1}, s{d+1}, {hex(stride << 16)}")
    a(f"s_mov_b32 s{d+2}, {size}")
    a(f"s_mov_b32 s{d+3}, 0x00020000")

def wave_scan(a, v):
    for sh in (1, 2, 4, 8):
        a("s_nop 1")
        a(f"v_add_u32_dpp v{v}, v{v}, v{v} row_shr:{sh} row_mask:0xf bank_mask:0xf bound_ctrl:0")
    a("s_nop 1")
    a(f"v_add_u32_dpp v{v}, v{v}, v{v} row_bcast:15 row_mask:0xa bank_mask:0xf")
    a("s_nop 1")
    a(f"v_add_u32_dpp v{v}, v{v}, v{v} row_bcast:31 row_mask:0xc bank_mask:0xf")

def gemm_dma_addrs(a, vl, vW, vX, t0, t1):
    a(f"v_lshrrev_b32 v{t0}, 3, v{vl}")
    a(f"v_and_b32 v{t1}, 2, v{t0}")
    a(f"v_and_b32 v{vW}, 7, v{vl}")
    a(f"v_xor_b32 v{vW}, v{vW}, v{t1}")
    a(f"v_lshlrev_b32 v{vW}, 4, v{vW}")
    a(f"v_lshl_or_b32 v{vW}, v{t0}, 8, v{vW}")
    a(f"v_lshrrev_b32 v{t0}, 4, v{vl}")
    a(f"v_and_b32 v{t1}, 15, v{vl}")
    a(f"v_xor_b32 v{vX}, v{t1}, v{t0}")
    a(f"v_lshlrev_b32 v{vX}, 4, v{vX}")
    a(f"v_lshl_or_b32 v{vX}, v{t0}, 8, v{vX}")

def gemm_read_addrs(a, vl, vA, vB, t0, t1):
    a(f"v_lshrrev_b32 v{t0}, 4, v{vl}")
    a(f"v_and_b32 v{t1}, 15, v{vl}")
    a(f"v_xor_b32 v{vA}, v{t1}, v{t0}")
    a(f"v_lshlrev_b32 v{vA}, 4, v{vA}")
    a(f"v_lshl_or_b32 v{vA}, v{t1}, 8, v{vA}")
    a(f"v_bfe_u32 v{t1}, v{vl}, 2, 2")
    a(f"v_lshl_add_u32 v{vB}, v{t0}, 3, v{t1}")
    a(f"v_lshlrev_b32 v{vB}, 7, v{vB}")
    a(f"v_and_b32 v{t1}, 2, v{t1}")
    a(f"v_and_b32 v{t0}, 1, v{t0}")
    a(f"v_lshl_or_b32 v{t1}, v{t0}, 2, v{t1}")
    a(f"v_bfe_u32 v{t0}, v{vl}, 1, 1")
    a(f"v_xor_b32 v{t0}, v{t0}, v{t1}")
    a(f"v_lshl_or_b32 v{vB}, v{t0}, 4, v{vB}")
    a(f"v_and_b32 v{t0}, 1, v{vl}")
    a(f"v_lshl_or_b32 v{vB}, v{t0}, 3, v{vB}")

def bucket_slice(a, sBK, sSL):
    a(f"s_bfe_u32 s{sSL}, s2, 0x10002")
    a("s_lshr_b32 s3, s2, 3")
    a(f"s_and_b32 s{sBK}, s2, 3")
    a(f"s_lshl_b32 s{sBK}, s{sBK}, 5")
    a(f"s_or_b32 s{sBK}, s{sBK}, s3")

HIST1, START1, HIST, FLAG, CNT, ZERO, START, DEN, NUM, AP, USTG, REC = 0, 512, 1024, 1536, 1552, 1792, 2048, 2560, 27904, 53248, 78848, 93440
XL, RECL, WL = 2560, 31232, 93440
USTR = 144
K2_LDS = REC + 67840
CAPT = 2112
KMAX = 9
WS_TF = WS_OFF + 0x40000
SPIN = 30000
KN = "standalone__edge_featured_mpnn_gatedgcn__graph_kernel"
LD = " sc1"

def gen_f(a):
    a(f"{KN}:")
    a("s_cmp_ge_u32 s2, 256")
    a("s_cbranch_scc1 K2_END")
    stamp(a, 0)
    a("s_load_dwordx16 s[4:19], s[0:1], 0")
    a("s_load_dwordx8 s[20:27], s[0:1], 64")
    a("s_memrealtime s[72:73]")
    pX, pAT, pSRC, pDST, pWA, pWB, pWC, pWU, pWV, pOUT, pDBG, pWS = 4, 6, 8, 10, 12, 14, 16, 18, 20, 22, 24, 26
    SA, SB, SC, STAB, SREC, SOUT = 28, 32, 36, 40, 44, 48
    sWV, sSL, sBK, sROW, sTB, sOUTO, sN0, sN1 = 52, 53, 54, 55, 56, 57, 72, 73
    vl, vbase, vrem, XF, vt16, vOUT, vZ, v12c, vinc, vF, ID = 1, 2, 3, 4, 8, 9, 10, 11, 12, 13, 14
    G = [16, 28]
    T = [40, 48]
    H = [56, 64]
    AOP = 72
    IDX = 80
    APR = 84
    AAD = 88
    P_, D_, N_ = 92, 96, 100
    ACCD, ACCN = 104, 108
    NO, vrs, vra, vTL = 112, 113, 114, 115
    R = [18, 24, 30, 36, 92, 96, 100, 104, 108]
    t0, t1 = 13, 115
    vW, vX = 113, 114
    HA = 40; S0 = 56; D0 = 68
    veff, vone = 116, 117
    WC = 84
    Z = 120
    vPF = 118
    PF2 = int(OPT.get("pf2", "1")); PFW = int(OPT.get("pfw", "12"))
    pD, pS, pA, pB, pR, pM, pC, pSum, pSt, pP = 16, 18, 20, 24, 26, 28, 32, 34, 36, 38
    pOne, pL8, pCo, pN = 40, 41, 44, 56
    uid = [0]
    def spin_exit(reg):
        a(f"s_sub_u32 s{reg}, s{reg}, 1")
        a(f"s_cmp_eq_u32 s{reg}, 0")
        a("s_cbranch_scc1 K2_END")
    def ensure_nonce():
        uid[0] += 1
        n = uid[0]
        a(f"s_mov_b32 s59, {SPIN}")
        a(f"F_NONCE{n}:")
        a(f"s_cmp_lg_u32 s{sN0}, 0")
        a(f"s_cbranch_scc1 F_NONCED{n}")
        srd(a, SA, pDBG, 8)
        a(f"v_mov_b32 v{t0}, 0")
        a(f"buffer_load_dwordx2 v[122:123], v{t0}, s[{SA}:{SA+3}], 0 offen sc1")
        a("s_waitcnt vmcnt(0)")
        a(f"v_readfirstlane_b32 s{sN0}, v122")
        a(f"v_readfirstlane_b32 s{sN1}, v123")
        spin_exit(59)
        a(f"s_branch F_NONCE{n}")
        a(f"F_NONCED{n}:")
    def last_of(cnt, n, label):
        a("s_waitcnt vmcnt(0)")
        a("s_mov_b64 exec, 1")
        a(f"v_mov_b32 v122, {cnt}")
        a("v_mov_b32 v123, 1")
        a("ds_add_rtn_u32 v123, v122, v123")
        a("s_waitcnt lgkmcnt(0)")
        a("v_readfirstlane_b32 s58, v123")
        a("s_mov_b64 exec, -1")
        a(f"s_cmp_lg_u32 s58, {n-1}")
        a(f"s_cbranch_scc1 {label}")

    a(f"v_lshrrev_b32 v{t0}, 6, v0")
    a(f"v_lshlrev_b32 v{vt16}, 4, v0")
    bucket_slice(a, sBK, sSL)
    a(f"v_readfirstlane_b32 s{sWV}, v{t0}")
    a(f"v_lshlrev_b32 v{pCo}, 3, v0")
    a("s_movk_i32 s58, 800")
    a("v_cmp_gt_u32 s[70:71], s58, v0")
    a(f"s_cmp_lt_u32 s2, {NCH}")
    a("s_cselect_b64 s[70:71], s[70:71], 0")
    a(f"s_mul_i32 s58, s2, {CHE*4}")
    a("s_lshl_b32 s59, s58, 1")
    a(f"v_mov_b64 {vr(Z,2)}, 0")
    a(f"v_mov_b64 {vr(Z+2,2)}, 0")
    a(f"s_or_b32 s3, s2, s{sWV}")
    a("s_waitcnt lgkmcnt(0)")
    a("s_cmp_lg_u32 s3, 0")
    a("s_cbranch_scc1 F_NOTFIRST")
    a(f"s_or_b32 s{sN0}, s{sN0}, 1")
    a(f"s_lshl_b32 s{sN1}, s{sN1}, 22")
    srd(a, SA, pDBG, 8)
    a(f"v_mov_b32 v118, s{sN0}")
    a(f"v_mov_b32 v119, s{sN1}")
    a("s_mov_b64 exec, 1")
    a(f"buffer_store_dwordx2 v[118:119], v{Z}, s[{SA}:{SA+3}], 0 offen sc1")
    a("F_NOTFIRST:")
    a("s_mov_b64 exec, s[70:71]")
    srd(a, SA, pDST, E * 4)
    a(f"buffer_load_dwordx2 {vr(pD,2)}, v{pCo}, s[{SA}:{SA+3}], s58 offen")
    srd(a, SB, pSRC, E * 4)
    srd(a, SC, pAT, E * 8)
    a(f"buffer_load_dwordx2 {vr(pS,2)}, v{pCo}, s[{SB}:{SB+3}], s58 offen")
    a(f"buffer_load_dwordx4 {vr(pA,4)}, v{vt16}, s[{SC}:{SC+3}], s59 offen")
    a("s_mov_b64 exec, -1")
    a("s_movk_i32 s58, 128")
    a("v_cmp_gt_u32 vcc, s58, v0")
    a(f"v_and_b32 v{vl}, 63, v0")
    a("s_mov_b64 exec, vcc")
    a(f"ds_write_b128 v{vt16}, {vr(Z,4)}")
    a("s_mov_b64 exec, -1")
    gemm_dma_addrs(a, vl, vW, vX, t0, t1)
    a(f"s_mul_i32 s{sTB}, s{sSL}, {TS}")
    if WSB:
        a(f"s_add_u32 s{sTB}, s{sTB}, {WSB}")
    a(f"s_mul_i32 s{sROW}, s{sBK}, {NPB*256}")
    a(f"s_lshl_b32 s3, s{sSL}, 7")
    a(f"s_add_u32 s{sOUTO}, s{sROW}, s3")
    a(f"s_add_u32 s62, s{sROW}, {NPB*256}")
    a(f"s_min_u32 s62, s62, {N*256}")
    a(f"s_bitcmp1_b32 s{sWV}, 0")
    a(f"s_cselect_b64 s[58:59], s[{pWV}:{pWV+1}], s[{pWB}:{pWB+1}]")
    a(f"s_cselect_b64 s[60:61], s[{pWU}:{pWU+1}], s[{pWA}:{pWA+1}]")
    a(f"s_bitcmp1_b32 s{sWV}, 1")
    a("s_cselect_b64 s[58:59], s[60:61], s[58:59]")
    srd(a, SA, 58, 32768)
    srd(a, SB, pX, "s62")
    a(f"s_lshr_b32 s60, s{sWV}, 2")
    a("s_lshl_b32 s58, s60, 13")
    a("s_add_u32 s58, s58, s3")
    a("s_lshl_b32 s60, s60, 12")
    a(f"s_and_b32 s61, s{sWV}, 3")
    a("s_lshl_b32 s61, s61, 14")
    a("s_add_u32 s60, s60, s61")
    a(f"s_add_u32 s60, s60, {WL}")
    a(f"v_xor_b32 v{t0}, 64, v{vW}")
    a("s_waitcnt lgkmcnt(0)")
    a("s_barrier")
    for i in range(4):
        a("s_mov_b32 m0, s60")
        a("s_add_u32 s60, s60, 1024")
        a(f"buffer_load_dwordx4 v{t0 if i & 1 else vW}, s[{SA}:{SA+3}], s58 offen lds")
        a("s_add_u32 s58, s58, 2048")
    a(f"s_lshl_b32 s58, s{sWV}, 11")
    a(f"s_add_u32 s60, s58, {XL}")
    a(f"s_add_u32 s58, s58, s{sROW}")
    a(f"s_and_b32 s61, s{sWV}, 1")
    a("s_lshl_b32 s61, s61, 7")
    a(f"v_xor_b32 v{t0}, s61, v{vX}")
    a(f"v_xor_b32 v{t1}, 64, v{t0}")
    a(f"s_cmp_lt_u32 s{sWV}, 14")
    a("s_cselect_b64 exec, -1, 0")
    a("s_mov_b32 m0, s60")
    a("s_add_u32 s60, s60, 1024")
    a(f"buffer_load_dwordx4 v{t0}, s[{SB}:{SB+3}], s58 offen lds")
    a("s_mov_b32 m0, s60")
    a("s_add_u32 s58, s58, 1024")
    a(f"buffer_load_dwordx4 v{t1}, s[{SB}:{SB+3}], s58 offen lds")
    a("s_mov_b64 exec, -1")
    a(f"v_lshrrev_b32 v{t0}, 3, v0")
    a(f"v_and_b32 v{t1}, 7, v0")
    a(f"v_lshlrev_b32 v{vOUT}, 4, v{t1}")
    a(f"v_lshl_or_b32 v{vOUT}, v{t0}, 8, v{vOUT}")
    a(f"s_lshl_b32 s58, s{sSL}, 3")
    a(f"v_or_b32 v{t1}, s58, v{t1}")
    a(f"v_and_b32 v{XF}, 15, v{t0}")
    a(f"v_xor_b32 v{t1}, v{t1}, v{XF}")
    a(f"v_lshlrev_b32 v{t1}, 4, v{t1}")
    a(f"v_lshl_or_b32 v{XF}, v{t0}, 8, v{t1}")
    a(f"v_add_u32 v{XF}, {XL}, v{XF}")
    a(f"v_mov_b32 v{pOne}, 1")
    a(f"v_lshlrev_b32 v{pL8}, 3, v{vl}")
    a("s_movk_i32 s58, -98")
    srd(a, SA, pDBG, 8)
    a("s_mov_b64 exec, s[70:71]")
    a("s_waitcnt vmcnt(8)")
    stamp(a, 1)
    for j in range(2):
        a(f"v_mul_u32_u24 v{pM+j}, 10700, v{pD+j}")
        a(f"v_lshrrev_b32 v{pM+j}, 20, v{pM+j}")
        a(f"v_lshlrev_b32 v{pB+j}, 2, v{pM+j}")
        a(f"ds_add_rtn_u32 v{pR+j}, v{pB+j}, v{pOne} offset:{HIST1}")
    for j in range(2):
        a(f"v_mad_i32_i24 v{pM+j}, v{pM+j}, s58, v{pD+j}")
    a("s_mov_b64 exec, -1")
    a(f"buffer_load_dwordx2 {vr(pN,2)}, v{Z}, s[{SA}:{SA+3}], 0 offen sc1")
    a("s_waitcnt lgkmcnt(0)")
    a("s_barrier")
    a(f"ds_read_b64 {vr(pC,2)}, v{pL8} offset:{HIST1}")
    a("s_waitcnt lgkmcnt(0)")
    a(f"v_add_u32 v{pSum}, v{pC}, v{pC+1}")
    wave_scan(a, pSum)
    a(f"v_mov_b32 v{pSt}, {RECL}")
    a(f"v_sub_u32 v{pP+1}, v{pSum}, v{pC+1}")
    a(f"v_sub_u32 v{pP}, v{pP+1}, v{pC}")
    a(f"v_mad_u32_u24 v{pSt+1}, v{pP+1}, 12, v{pSt}")
    a(f"v_mad_u32_u24 v{pSt}, v{pP}, 12, v{pSt}")
    a(f"ds_write_b64 v{pL8}, {vr(pSt,2)} offset:{START1}")
    a("s_mov_b64 exec, s[70:71]")
    for j in range(2):
        a(f"ds_read_b32 v{pB+j}, v{pB+j} offset:{START1}")
    a("s_waitcnt vmcnt(8)")
    for j in range(2):
        a(f"v_lshl_or_b32 v{pM+j}, v{pM+j}, 24, v{pS+j}")
    a("s_waitcnt vmcnt(7)")
    for j in range(2):
        a(f"s_waitcnt lgkmcnt({1+j})")
        a(f"v_mad_u32_u24 v{pB+j}, v{pR+j}, 12, v{pB+j}")
        a(f"ds_write2_b32 v{pB+j}, v{pA+2*j}, v{pA+1+2*j} offset0:0 offset1:1")
        a(f"ds_write_b32 v{pB+j}, v{pM+j} offset:8")
    a("s_mov_b64 exec, -1")
    a(f"s_mul_i32 s58, s2, {REC_STRIDE}")
    a(f"s_add_u32 s58, s58, {WS_REC}")
    a(f"s_cmp_lt_u32 s2, {NCH}")
    a(f"s_cselect_b32 s59, {REC_STRIDE}, 0")
    srd(a, SA, pWS, "s59", add="s58")
    a(f"s_cmp_lt_u32 s{sWV}, 8")
    a("s_waitcnt lgkmcnt(0)")
    a("s_barrier")
    stamp(a, 2)
    if STAMP: a("s_waitcnt lgkmcnt(0)")
    a("s_cbranch_scc1 F_GEMM")
    a(f"v_subrev_u32 v{t0}, 0x2000, v{vt16}")
    for i in range(3):
        a(f"ds_read_b128 {vr(pCo+4*i,4)}, v{t0} offset:{RECL+8192*i}")
    a("s_movk_i32 s58, 0x2000")
    a("s_movk_i32 s59, 0x4000")
    so = ["0", "s58", "s59"]
    for i in range(3):
        a(f"s_waitcnt lgkmcnt({2-i})")
        a(f"buffer_store_dwordx4 {vr(pCo+4*i,4)}, v{t0}, s[{SA}:{SA+3}], {so[i]} offen sc1")
    a("s_waitcnt vmcnt(3)")
    a("s_barrier")
    a(f"ds_read_b128 {vr(XF,4)}, v{XF}")
    a(f"v_readfirstlane_b32 s{sN0}, v{pN}")
    a(f"v_readfirstlane_b32 s{sN1}, v{pN+1}")
    a(f"v_lshl_or_b32 v{pP}, v{pC}, 11, v{pP}")
    a(f"v_lshl_or_b32 v{pC}, v{pC+1}, 11, v{pP+1}")
    ensure_nonce()
    last_of(CNT, 8, "F_COMMON")
    a(f"s_cmp_ge_u32 s2, {NCH}")
    a("s_cbranch_scc1 F_COMMON")
    srd(a, SA, pWS, NBK * 2048, add=hex(WS_OFF))
    a(f"v_or_b32 v{pP}, s{sN1}, v{pP}")
    a(f"v_mov_b32 v{pP+1}, s{sN0}")
    a(f"v_or_b32 v{pC}, s{sN1}, v{pC}")
    a(f"v_mov_b32 v{pC+1}, s{sN0}")
    a(f"v_lshlrev_b32 v{t0}, 12, v{vl}")
    a("s_lshl_b32 s58, s2, 3")
    a(f"buffer_store_dwordx2 {vr(pP,2)}, v{t0}, s[{SA}:{SA+3}], s58 offen sc1")
    a(f"buffer_store_dwordx2 {vr(pC,2)}, v{t0}, s[{SA}:{SA+3}], s58 offen offset:2048 sc1")
    a("s_branch F_COMMON")
    a("F_GEMM:")
    XB, WB, GA = 16, 32, 48
    aB = [112, 113, 114, 115]; vA = 116; g0, g1 = 117, 118
    gemm_read_addrs(a, vl, vA, aB[0], g0, g1)
    a(f"s_and_b32 s60, s{sWV}, 3")
    a("s_lshl_b32 s61, s60, 13")
    a(f"s_add_u32 s58, s61, {XL}")
    a(f"v_add_u32 v{vA}, s58, v{vA}")
    a(f"s_lshr_b32 s58, s{sWV}, 2")
    a("s_lshl_b32 s58, s58, 15")
    a(f"s_add_u32 s58, s58, {WL}")
    a(f"v_add_u32 v{aB[0]}, s58, v{aB[0]}")
    for q in range(1, 4):
        a(f"v_xor_b32 v{aB[q]}, {32*q}, v{aB[0]}")
    a("s_waitcnt vmcnt(0)")
    a(f"v_readfirstlane_b32 s{sN0}, v{pN}")
    a(f"v_readfirstlane_b32 s{sN1}, v{pN+1}")
    a("s_barrier")
    class LQ:
        def __init__(self): self.q = []
        def issue(self, tag, text): a(text); self.q.append(tag)
        def wait(self, *tags):
            last = max(i for i, t in enumerate(self.q) if t in tags)
            n = len(self.q) - 1 - last
            assert n <= 15
            a(f"s_waitcnt lgkmcnt({n})")
            self.q = self.q[last + 1:]
    def xrd(lq, st):
        if st:
            a(f"v_xor_b32 v{g0}, {64*st}, v{vA}")
        for i in range(2):
            lq.issue(("x", st), f"ds_read_b128 {vr(XB+8*(st&1)+4*i,4)}, v{g0 if st else vA} offset:{4096*i}")
    def wrd(lq, st, m, q):
        for u in range(2):
            lq.issue(("w", st, m, q), f"ds_read_b64_tr_b16 {vr(WB+4*q+2*u,2)}, v{aB[q]} offset:{m*16384+st*4096+u*512}")
    lq0 = LQ()
    xrd(lq0, 0)
    for q in range(4):
        wrd(lq0, 0, 0, q)
    xrd(lq0, 1)
    lq0.issue("xf", f"ds_read_b128 {vr(XF,4)}, v{XF}")
    a(f"s_cmp_ge_u32 s{sWV}, 4")
    a("s_cbranch_scc1 F_GEMMAU")
    def chain(swap1):
        lq = LQ(); lq.q = list(lq0.q)
        seq = [(st, m) for st in range(4) for m in range(2)]
        for n, (st, m) in enumerate(seq):
            for q in range(4):
                need = [("w", st, m, q)] + ([("x", st)] if ("x", st) in lq.q else [])
                lq.wait(*need)
                for i in range(2):
                    d = GA + 32 * i + 16 * m + 4 * q
                    c = "0" if st == 0 else vr(d, 4)
                    x, w = vr(XB+8*(st&1)+4*i, 4), vr(WB+4*q, 4)
                    sw = swap1 and m == 1
                    a(f"v_mfma_f32_16x16x32_bf16 {vr(d,4)}, {w if sw else x}, {x if sw else w}, {c}")
                if n + 1 < len(seq):
                    wrd(lq, *seq[n + 1], q)
                if m == 1 and q == 3 and st < 2:
                    xrd(lq, st + 2)
    chain(False)
    srd(a, SA, pWS, "s62", add=f"s{sTB}")
    a(f"s_mov_b32 s58, {f32(-LOG2E)}")
    a("s_mov_b32 s59, s58")
    a(f"v_lshrrev_b32 v{g0}, 4, v{vl}")
    a(f"v_and_b32 v{g1}, 15, v{vl}")
    a(f"v_lshlrev_b32 v{g1}, 4, v{g1}")
    a(f"v_lshl_or_b32 v{g0}, v{g0}, 10, v{g1}")
    a(f"s_add_u32 s61, s61, s{sROW}")
    for i in range(2):
        b = GA + 32 * i
        for k in range(8):
            a(f"v_pk_mul_f32 {vr(b+2*k,2)}, {vr(b+2*k,2)}, s[58:59]")
        for r in range(4):
            o = XB + 16 * i + 4 * r
            a(f"v_cvt_pk_bf16_f32 v{o}, v{b+r}, v{b+4+r}")
            a(f"v_cvt_pk_bf16_f32 v{o+1}, v{b+8+r}, v{b+12+r}")
            a(f"v_cvt_pk_bf16_f32 v{o+2}, v{b+16+r}, v{b+20+r}")
            a(f"v_cvt_pk_bf16_f32 v{o+3}, v{b+24+r}, v{b+28+r}")
            a(f"buffer_store_dwordx4 {vr(o,4)}, v{g0}, s[{SA}:{SA+3}], s61 offen offset:{256*r} sc1")
        if i == 0:
            a("s_add_u32 s61, s61, 4096")
    a(f"s_lshl_b32 s58, s{sBK}, 2")
    a(f"s_or_b32 s58, s58, s{sWV}")
    a("s_cmp_lg_u32 s58, 3")
    a("s_cbranch_scc1 F_NODUMMYROW")
    a(f"s_mov_b32 s{SA+2}, {(N+1)*256}")
    a(f"s_mov_b32 s58, {N*256}")
    a(f"v_mov_b32 v{GA}, 0x70007000")
    a(f"v_mov_b32 v{GA+1}, 0x70007000")
    a(f"v_mov_b64 {vr(GA+2,2)}, 0")
    a("s_mov_b64 exec, 0xffff")
    a(f"buffer_store_dwordx4 {vr(GA,4)}, v{g0}, s[{SA}:{SA+3}], s58 offen sc1")
    a("s_mov_b64 exec, -1")
    a("F_NODUMMYROW:")
    ensure_nonce()
    last_of(CNT + 4, 4, "F_COMMON")
    srd(a, SA, pWS, 2048, add=hex(WS_TF))
    a(f"s_lshl_b32 s58, s{sSL}, 7")
    a(f"s_or_b32 s58, s58, s{sBK}")
    a("s_lshl_b32 s58, s58, 3")
    a(f"v_mov_b32 v122, s{sN1}")
    a(f"v_mov_b32 v123, s{sN0}")
    a(f"v_mov_b32 v{t0}, 0")
    a("s_mov_b64 exec, 1")
    a(f"buffer_store_dwordx2 v[122:123], v{t0}, s[{SA}:{SA+3}], s58 offen sc1")
    a("s_mov_b64 exec, -1")
    a("s_branch F_COMMON")
    a("F_GEMMAU:")
    chain(True)
    a("s_cmp_eq_u32 s60, 3")
    a("s_cselect_b32 s70, 0, -1")
    a("s_mov_b32 s71, s70")
    a(f"v_lshrrev_b32 v{g0}, 4, v{vl}")
    a(f"v_and_b32 v{g1}, 15, v{vl}")
    a(f"v_lshlrev_b32 v{aB[0]}, 4, v{g1}")
    a(f"v_lshl_or_b32 v{aB[0]}, v{g0}, 10, v{aB[0]}")
    a(f"v_add_u32 v{aB[0]}, s61, v{aB[0]}")
    a(f"v_mul_u32_u24 v{g1}, {USTR}, v{g1}")
    a(f"v_lshl_add_u32 v{g0}, v{g0}, 3, v{g1}")
    a(f"s_mul_i32 s58, s60, {32*USTR}")
    a(f"s_add_u32 s58, s58, {USTG}")
    a(f"v_add_u32 v{g0}, s58, v{g0}")
    a(f"s_mov_b32 s58, {f32(-LOG2E)}")
    a(f"v_mov_b32 v{g1}, {f32(-float(SHIFT))}")
    for i in range(2):
        b = GA + 32 * i
        if i == 0:
            a("s_or_b32 s68, s70, 0xffff")
            a("s_mov_b32 s69, s70")
        a(f"s_mov_b64 exec, {'s[70:71]' if i else 's[68:69]'}")
        for r in range(4):
            for q in range(4):
                a(f"v_fma_f32 v{XB+4*r+q}, v{b+4*q+r}, s58, v{g1}")
            a(f"ds_write_b128 v{aB[0]}, {vr(XB+4*r,4)} offset:{AP+4096*i+256*r}")
        if i == 0:
            a("s_or_b32 s68, s70, 0x000f000f")
            a("s_mov_b32 s69, s68")
            a("s_mov_b64 exec, s[68:69]")
        for q in range(4):
            a(f"v_cvt_pk_bf16_f32 v{WB+2*q}, v{b+16+4*q}, v{b+16+4*q+1}")
            a(f"v_cvt_pk_bf16_f32 v{WB+2*q+1}, v{b+16+4*q+2}, v{b+16+4*q+3}")
            a(f"ds_write_b64 v{g0}, {vr(WB+2*q,2)} offset:{16*USTR*i+32*q}")
    a("s_mov_b64 exec, -1")
    ensure_nonce()
    a("F_COMMON:")
    stamp(a, 3)
    srd(a, SB, pWC, 1024)
    a(f"v_lshlrev_b32 v{t0}, 1, v{vl}")
    a(f"s_lshl_b32 s58, s{sSL}, 7")
    for m in range(4):
        a(f"buffer_load_ushort v{WC+m}, v{t0}, s[{SB}:{SB+3}], s58 offen offset:{256*m}")
    a(f"s_lshl_b32 s58, s{sBK}, 11")
    a(f"s_add_u32 s58, s58, {WS_OFF}")
    srd(a, SA, pWS, NCH * 8, add="s58")
    srd(a, SREC, pWS, NCH * REC_STRIDE, add=hex(WS_REC))
    a(f"v_lshrrev_b32 v{vbase}, 2, v0")
    a(f"v_lshlrev_b32 v{t0}, 3, v{vbase}")
    a(f"s_movk_i32 s58, {NCH}")
    a(f"v_cmp_le_u32 s[70:71], s58, v{vbase}")
    a(f"v_and_b32 v{t1}, 3, v0")
    a(f"v_mul_u32_u24 v{vbase}, {REC_STRIDE}, v{vbase}")
    a(f"v_mad_u32_u24 v{vbase}, v{t1}, 12, v{vbase}")
    a(f"s_mov_b32 s59, {SPIN}")
    a("F_POLL:")
    a(f"buffer_load_dwordx2 v[122:123], v{t0}, s[{SA}:{SA+3}], 0 offen sc1")
    spin_exit(59)
    a("s_waitcnt vmcnt(0)")
    a(f"v_and_b32 v{vrem}, 0xffc00000, v122")
    a(f"v_cmp_eq_u32 vcc, s{sN0}, v123")
    a(f"v_cmp_eq_u32 s[68:69], s{sN1}, v{vrem}")
    a("s_and_b64 vcc, vcc, s[68:69]")
    a("s_or_b64 vcc, vcc, s[70:71]")
    a("s_cmp_eq_u64 vcc, -1")
    a("s_cbranch_scc0 F_POLL")
    stamp(a, 4)
    a(f"v_and_b32 v{t0}, 0x7ff, v122")
    a(f"v_bfe_u32 v{vrem}, v122, 11, 11")
    a(f"v_mad_u32_u24 v{vbase}, v{t0}, 12, v{vbase}")
    a(f"v_sub_u32 v{vrem}, v{vrem}, v{t1}")
    a("s_mov_b32 s60, 0")
    a("K2_ROUND:")
    for k in range(KMAX):
        a(f"v_cmpx_lt_i32 vcc, {4*k}, v{vrem}")
        a(f"buffer_load_dwordx3 {vr(R[k],3)}, v{vbase}, s[{SREC}:{SREC+3}], 0 offen offset:{48*k} sc1")
    a("s_mov_b64 exec, -1")
    a("s_cmp_lg_u32 s60, 0")
    a("s_cbranch_scc1 F_SETUPDONE")
    srd(a, SOUT, pOUT, N * 256)
    srd(a, STAB, pWS, (N + 1) * 256, add=f"s{sTB}", stride=256)
    a(f"s_mov_b32 s58, {f32(-LOG2E)}")
    for m in range(4):
        a(f"v_lshlrev_b32 v{WC+m}, 16, v{WC+m}")
        a(f"v_mul_f32 v{WC+m}, s58, v{WC+m}")
    a(f"v_cvt_pk_bf16_f32 v{G[0]}, v{WC}, v{WC+1}")
    a(f"v_cvt_pk_bf16_f32 v{G[0]+1}, v{WC+2}, v{WC+3}")
    for o in (G[0] + 6, G[1], G[1] + 6):
        a(f"v_mov_b64 {vr(o,2)}, {vr(G[0],2)}")
    a(f"v_and_b32 v{t0}, 15, v{vl}")
    a(f"v_lshlrev_b32 v{IDX+1}, 4, v{t0}")
    a(f"v_mov_b32 v{IDX+3}, v{IDX+1}")
    a(f"v_mul_u32_u24 v{v12c}, 12, v{t0}")
    a(f"v_and_b32 v{t0}, 1, v{vl}")
    a(f"v_lshlrev_b32 v{t0}, 4, v{t0}")
    a("s_movk_i32 s58, 0x3f80")
    a(f"v_lshlrev_b32 v{t0}, v{t0}, s58")
    a(f"v_and_b32 v{t1}, 2, v{vl}")
    a(f"v_cmp_eq_u32 vcc, 0, v{t1}")
    a(f"v_lshrrev_b32 v{vW}, 4, v{vl}")
    a(f"v_bfe_u32 v{vX}, v{vl}, 2, 2")
    a(f"v_cndmask_b32 v{ID}, 0, v{t0}, vcc")
    a(f"v_cndmask_b32 v{ID+1}, v{t0}, 0, vcc")
    a(f"v_cmp_eq_u32 vcc, v{vW}, v{vX}")
    a(f"v_and_b32 v{t0}, 3, v{vl}")
    a(f"v_cmp_eq_u32 s[74:75], v{vW}, v{t0}")
    a(f"v_cndmask_b32 v{AOP+2}, 0, v{ID}, vcc")
    a(f"v_cndmask_b32 v{AOP+3}, 0, v{ID+1}, vcc")
    a(f"v_mov_b32 v{t0}, 0x80")
    a(f"v_mov_b64 {vr(AOP+6,2)}, {vr(AOP+2,2)}")
    a(f"v_cndmask_b32 v{vinc}, 0, v{t0}, s[74:75]")
    a(f"v_mov_b32 v{vZ}, {ZERO}")
    a(f"s_mov_b32 s66, {f32(2.0**-SHIFT)}")
    a("s_mov_b32 s67, s66")
    a("F_SETUPDONE:")
    def prefetch(tag, first, n):
        nw = 16 - PFW
        a(f"s_cmp_lt_u32 s{sWV}, {PFW}")
        a(f"s_cbranch_scc1 K2_NOPF{tag}")
        a(f"s_lshl_b32 s58, s{sSL}, 10")
        a(f"s_add_u32 s58, s58, {WS_TF}")
        srd(a, SA, pWS, 1024, add="s58")
        a(f"v_lshlrev_b32 v{NO}, 4, v{vl}")
        a(f"s_mov_b32 s59, {SPIN}")
        a("F_TPOLL:")
        a(f"buffer_load_dwordx4 v[120:123], v{NO}, s[{SA}:{SA+3}], 0 offen sc1")
        spin_exit(59)
        a("s_waitcnt vmcnt(0)")
        a(f"v_cmp_eq_u32 vcc, s{sN1}, v120")
        a(f"v_cmp_eq_u32 s[68:69], s{sN0}, v121")
        a("s_and_b64 vcc, vcc, s[68:69]")
        a(f"v_cmp_eq_u32 s[70:71], s{sN1}, v122")
        a(f"v_cmp_eq_u32 s[68:69], s{sN0}, v123")
        a("s_and_b64 vcc, vcc, s[70:71]")
        a("s_and_b64 vcc, vcc, s[68:69]")
        a("s_cmp_eq_u64 vcc, -1")
        a("s_cbranch_scc0 F_TPOLL")
        if n:
            a("s_lshr_b32 s58, s2, 3")
            a(f"s_mul_i32 s58, s58, {391*256}")
            a(f"s_add_u32 s58, s58, s{sTB}")
            srd(a, 76, pWS, 391 * 256, add="s58")
            a(f"v_subrev_u32 v{NO}, {64*PFW}, v0")
            a(f"v_lshlrev_b32 v{NO}, 7, v{NO}")
            for i in range(first, first + n):
                a(f"s_mov_b32 s58, {i*nw*8192}")
                a(f"buffer_load_dword v{vPF}, v{NO}, s[76:79], s58 offen sc1")
        a(f"K2_NOPF{tag}:")
    PF1 = 0
    a(f"s_mov_b32 s61, {4*KMAX}")
    a(f"v_mov_b32 v{vone}, 1")
    a("K2_RANK:")
    a("s_sub_u32 s58, s61, 3")
    a(f"v_min_i32 v{veff}, s58, v{vrem}")
    a(f"v_cmpx_lt_i32 vcc, s61, v{vrem}")
    a("s_cbranch_execz K2_NOFLAG")
    a(f"v_mov_b32 v{t0}, {FLAG}")
    a(f"ds_write_b32 v{t0}, v{vone}")
    a("K2_NOFLAG:")
    a("s_mov_b64 exec, -1")
    for k in range(KMAX):
        a(f"v_cmpx_lt_i32 vcc, {4*k}, v{veff}")
        if k >= 4:
            a("s_cbranch_execz K2_RANKED")
        a(f"s_waitcnt vmcnt({KMAX-1-k})")
        a(f"v_lshrrev_b32 v{HA+k}, 22, v{R[k]+2}")
        a(f"ds_add_rtn_u32 v{R[k]+3}, v{HA+k}, v{vone} offset:{HIST}")
    a("K2_RANKED:")
    a("s_mov_b64 exec, -1")

    a(f"v_lshlrev_b32 v{t0}, 3, v{vl}")
    a(f"v_mov_b32 v{vW}, {FLAG}")
    a(f"v_mov_b64 {vr(D0,2)}, 0")
    a(f"v_mov_b32 v{D0+2}, {N | (NPB << 24)}")
    a("s_waitcnt lgkmcnt(0)")
    a("s_barrier")
    stamp(a, 5)
    if STAMP: a("s_waitcnt lgkmcnt(0)")
    a(f"ds_read_b64 {vr(S0,2)}, v{t0} offset:{HIST}")
    a(f"ds_read_b32 v{S0+2}, v{vW}")
    prefetch("B", PF1, PF2)
    a("s_waitcnt lgkmcnt(1)")
    a(f"v_add_u32 v{S0+4}, 1, v{S0}")
    a(f"v_add_u32 v{S0+5}, 1, v{S0+1}")
    a(f"v_lshrrev_b32 v{S0+4}, 1, v{S0+4}")
    a(f"v_lshrrev_b32 v{S0+5}, 1, v{S0+5}")
    a(f"v_add_u32 v{S0+7}, v{S0+4}, v{S0+5}")
    wave_scan(a, S0 + 7)
    a(f"s_mov_b32 s58, {REC}")
    a(f"v_sub_u32 v{S0+9}, v{S0+7}, v{S0+5}")
    a(f"v_readlane_b32 s62, v{S0+7}, 63")
    a(f"v_sub_u32 v{S0+8}, v{S0+9}, v{S0+4}")
    a(f"v_lshl_add_u32 v{S0+9}, v{S0+9}, 5, s58")
    a(f"v_lshl_add_u32 v{S0+8}, v{S0+8}, 5, s58")
    a(f"s_cmp_le_u32 s62, {CAPT}")
    a("s_cbranch_scc0 K2_TOOMANY")
    a(f"ds_write_b64 v{t0}, {vr(S0+8,2)} offset:{START}")
    for k in range(KMAX):
        a(f"v_cmpx_lt_i32 vcc, {4*k}, v{veff}")
        if k >= 4:
            a("s_cbranch_execz K2_STARTED")
        a(f"ds_read_b32 v{HA+k}, v{HA+k} offset:{START}")
    a("K2_STARTED:")
    a("s_mov_b64 exec, -1")
    a("s_add_u32 s64, s62, 63")
    a("s_lshr_b32 s64, s64, 6")
    a("s_max_u32 s64, s64, 16")
    a("s_lshl_b32 s58, s64, 6")
    a("s_add_u32 s58, s58, 4")
    a("s_sub_u32 s58, s58, s62")
    a("s_lshl_b32 s58, s58, 1")
    a(f"s_lshl_b32 s59, s{sWV}, 6")
    a("s_cmp_le_u32 s58, s59")
    a("s_cbranch_scc1 K2_FILLED")
    a("s_lshl_b32 s59, s62, 5")
    a(f"s_add_u32 s59, s59, {REC}")
    a(f"v_add_u32 v{D0+4}, s59, v{vt16}")
    a(f"v_sub_u32 v{D0+5}, s58, v0")
    for i in range(3):
        a(f"v_cmpx_lt_i32 vcc, 0, v{D0+5}")
        a(f"ds_write_b96 v{D0+4}, {vr(D0,3)} offset:{16384*i}")
        a(f"v_subrev_u32 v{D0+5}, 0x400, v{D0+5}")
    a("s_mov_b64 exec, -1")
    a("K2_FILLED:")
    a(f"s_cmp_lt_u32 s{sWV}, 15")
    a("s_cbranch_scc1 K2_NODUMMY")
    for h in range(2):
        a(f"v_lshlrev_b32 v{D0+2}, 25, v{vl}")
        a(f"v_or_b32 v{D0+2}, {N | (h << 24)}, v{D0+2}")
        a(f"v_lshl_add_u32 v{D0+4}, v{S0+h}, 4, v{S0+8+h}")
        a(f"v_and_b32 v{D0+5}, 1, v{S0+h}")
        a(f"v_cmpx_eq_u32 vcc, 1, v{D0+5}")
        a(f"ds_write_b96 v{D0+4}, {vr(D0,3)}")
        a("s_mov_b64 exec, -1")
        a("s_nop 0")
    a("K2_NODUMMY:")
    a(f"s_lshl_b32 s58, s64, 5")
    a(f"s_lshl_b32 s59, s{sWV}, 2")
    a("s_mul_i32 s59, s59, s58")
    a(f"s_add_u32 s59, s59, {REC}")
    a(f"v_lshrrev_b32 v{vrs}, 4, v{vl}")
    a(f"v_bfe_u32 v{vra}, v{vl}, 2, 2")
    a(f"v_mov_b32 v{t0}, s59")
    a(f"v_mad_u32_u24 v{vrs}, v{vrs}, s58, v{t0}")
    a(f"v_mad_u32_u24 v{vra}, v{vra}, s58, v{t0}")
    a(f"v_lshrrev_b32 v{t0}, 2, v{IDX+1}")
    a(f"v_cndmask_b32 v{vra}, v{vZ}, v{vra}, s[74:75]")
    a("s_waitcnt lgkmcnt(0)")
    a(f"v_readfirstlane_b32 s63, v{S0+2}")
    for k in range(KMAX):
        a(f"v_cmpx_lt_i32 vcc, {4*k}, v{veff}")
        if k >= 4:
            a("s_cbranch_execz K2_SCATTERED")
        a(f"v_lshl_add_u32 v{HA+k}, v{R[k]+3}, 4, v{HA+k}")
        a(f"ds_write_b96 v{HA+k}, {vr(R[k],3)}")
    a("K2_SCATTERED:")
    a("s_mov_b64 exec, -1")
    a("s_waitcnt vmcnt(0) lgkmcnt(0)" if OPT.get("pfwait") else "s_waitcnt lgkmcnt(0)")
    a("s_barrier")
    stamp(a, 6)
    if STAMP: a("s_waitcnt lgkmcnt(0)")

    def gload(st):
        g = G[st & 1]
        if OPT.get("nogather"):
            return
        a(f"buffer_load_dwordx4 {vr(g+2,4)}, {vr(IDX,2)}, s[{STAB}:{STAB+3}], 0 idxen offen sc1")
        a(f"buffer_load_dwordx4 {vr(g+8,4)}, {vr(IDX+2,2)}, s[{STAB}:{STAB+3}], 0 idxen offen sc1")
    def rd_idx(p):
        a(f"ds_read_u16 v{IDX}, v{vrs} offset:{32*p+8}")
        a(f"ds_read_u16 v{IDX+2}, v{vrs} offset:{32*p+24}")
    def rd_no(p, dst=NO):
        a(f"ds_read_u16 v{dst}, v{vrs} offset:{32*p+10}")
    def rd_a(p, aad):
        a(f"ds_read_b128 {vr(APR,4)}, v{aad} offset:{AP}")
        a(f"ds_read_b64 {vr(AOP,2)}, v{vra} offset:{32*p}")
        a(f"ds_read_b64 {vr(AOP+4,2)}, v{vra} offset:{32*p+16}")
    def mf(st):
        g, t, h = G[st & 1], T[st & 1], H[st & 1]
        return [f"v_mfma_f32_16x16x32_bf16 {vr(t,4)}, {vr(AOP,4)}, {vr(g,4)}, {vr(APR,4)}",
                f"v_mfma_f32_16x16x32_bf16 {vr(t+4,4)}, {vr(AOP+4,4)}, {vr(g+6,4)}, {vr(APR,4)}",
                f"v_mfma_f32_4x4x4_16b_bf16 {vr(h,4)}, {vr(ID,2)}, {vr(g+4,2)}, 0",
                f"v_mfma_f32_4x4x4_16b_bf16 {vr(h+4,4)}, {vr(ID,2)}, {vr(g+10,2)}, 0"]
    MK = [68, 70]
    rd_idx(0)
    rd_no(0, AAD)
    rd_no(1, AAD + 1)
    for i in range(4):
        a(f"v_mov_b64 {vr(ACCD+2*i,2)}, 0")
    a("s_waitcnt lgkmcnt(2)")
    gload(0)
    rd_idx(1)
    a("s_waitcnt lgkmcnt(2)")
    a(f"v_add_u32 v{AAD}, v{AAD}, v{IDX+1}")
    a(f"v_add_u32 v{AAD+1}, v{AAD+1}, v{IDX+1}")
    a("s_waitcnt lgkmcnt(0)")
    gload(1)
    rd_a(0, AAD)
    rd_idx(2)
    a(f"v_cmp_ne_u32 s[{MK[0]}:{MK[0]+1}], v{AAD}, v{AAD+1}")
    a("s_waitcnt vmcnt(2) lgkmcnt(0)")
    a(f"v_add_u32 v{vTL}, v{t0}, v{vrs}")
    for m in mf(0):
        a(m)
    gload(2)
    a("s_nop 1")
    rd_a(1, AAD + 1)
    rd_idx(3)
    rd_no(2)
    a("s_mov_b32 s65, s64")
    prio = OPT.get("prio", "16:8:4")
    if prio != "0":
        a("s_setprio 3")
    a(".p2align 5")
    a("K2_LOOP:")
    if prio != "0":
        th = [int(x) for x in prio.split(":")]
        for lvl, x in zip((2, 1, 0), th):
            a(f"s_cmp_gt_u32 s65, {x}")
            a("s_cbranch_scc1 K2_PRIO")
            a(f"s_setprio {lvl}")
        a("K2_PRIO:")
    def pk(op, d, x, y, z=None):
        for i in (0, 2):
            if z is None:
                a(f"v_pk_{op}_f32 {vr(d+i,2)}, {vr(x+i,2)}, {vr(y+i,2)}")
            else:
                a(f"v_pk_{op}_f32 {vr(d+i,2)}, {vr(x+i,2)}, {vr(y+i,2)}, {vr(z+i,2)}")
    for j in range(4):
        t, h = T[j & 1], H[j & 1]
        e = [f"v_exp_f32_e64 v{t+i}, v{t+i} clamp" for i in range(8)]
        m = mf(j + 1)
        a("s_waitcnt vmcnt(2) lgkmcnt(3)")
        for x in (e[0], m[0], e[1], m[1], e[2], m[2], e[3], m[3], e[4]):
            a(x)
        a("s_cmp_gt_u32 s65, 3")
        a("s_waitcnt lgkmcnt(0)")
        a(f"s_cbranch_scc0 K2_SKIP{j}")
        gload(j + 1)
        a(f"K2_BACK{j}:")
        a(e[5])
        a(f"v_add_u32 v{AAD+(j+2)%4}, v{NO}, v{IDX+1}")
        a(e[6])
        rd_a(j + 2, AAD + (j + 2) % 4)
        rd_idx(j + 4)
        rd_no(j + 3)
        a(e[7])
        mk = MK[(j + 1) & 1]
        a(f"v_cmp_ne_u32 s[{mk}:{mk+1}], v{AAD+(j+1)%4}, v{AAD+(j+2)%4}")
        for i in range(4):
            a(f"v_pk_add_f32 {vr(t+2*i,2)}, {vr(t+2*i,2)}, s[66:67]")
        pk("mul", P_, t, t + 4)
        pk("add", D_, t, t + 4)
        pk("mul", N_, h, t + 4)
        for i in range(4):
            a(f"v_rcp_f32 v{P_+i}, v{P_+i}")
        pk("fma", N_, h + 4, t, N_)
        if j == 3:
            a(f"v_add_u32 v{vrs}, 0x80, v{vrs}")
            a(f"v_add_u32 v{vra}, v{vinc}, v{vra}")
        pk("fma", ACCD, D_, P_, ACCD)
        pk("fma", ACCN, N_, P_, ACCN)
        a("s_sub_u32 s65, s65, 1")
        a("s_cmp_eq_u32 s65, 0")
        a(f"s_cbranch_scc1 K2_MAINDONE")
        mk = MK[j & 1]
        a(f"s_cmp_lg_u64 s[{mk}:{mk+1}], 0")
        if not OPT.get("noflush"):
            a(f"s_cbranch_scc1 K2_FLUSH{j}")
        if j == 3:
            a("s_branch K2_LOOP")
        else:
            a(f"K2_FBACK{j}:")
    for j in range(4):
        a(f"K2_SKIP{j}:")
        a("s_waitcnt vmcnt(0)")
        a(f"s_branch K2_BACK{j}")
        a(f"K2_FLUSH{j}:")
        mk = MK[j & 1]
        a(f"s_mov_b64 exec, s[{mk}:{mk+1}]")
        a(f"v_sub_u32 v{vF}, v{AAD+j}, v{v12c}")
        for q in range(4):
            a(f"ds_write_b32 v{vF}, v{ACCD+q} offset:{DEN+64*q}")
        for q in range(4):
            a(f"ds_write_b32 v{vF}, v{ACCN+q} offset:{NUM+64*q}")
        a(f"ds_read_b128 {vr(ACCD,4)}, v{vZ}")
        a(f"ds_read_b128 {vr(ACCN,4)}, v{vZ}")
        a("s_mov_b64 exec, -1")
        a("s_branch K2_LOOP" if j == 3 else f"s_branch K2_FBACK{j}")
    a("K2_TOOMANY:")
    a("s_cmp_eq_u32 s61, 16")
    a("s_cbranch_scc1 K2_END")
    a("s_waitcnt lgkmcnt(0)")
    a("s_barrier")
    a("s_movk_i32 s58, 33")
    a("v_cmp_gt_u32 vcc, s58, v0")
    for i in range(2):
        a(f"v_mov_b64 {vr(Z+2*i,2)}, 0")
    a("s_mov_b64 exec, vcc")
    a(f"ds_write_b128 v{vt16}, {vr(Z,4)} offset:{HIST}")
    a("s_mov_b64 exec, -1")
    a("s_mov_b32 s61, 16")
    a("s_waitcnt lgkmcnt(0)")
    a("s_barrier")
    a("s_branch K2_RANK")
    a("K2_MAINDONE:")
    stamp(a, 7)
    a("s_waitcnt lgkmcnt(0)")
    for q in range(4):
        a(f"ds_write_b32 v{vTL}, v{ACCD+q} offset:{64*q}")
    for q in range(4):
        a(f"ds_write_b32 v{vTL}, v{ACCN+q} offset:{256+64*q}")
    FD, FN, FU, TD, XU = 40, 48, 56, 92, 60
    UU = 116
    f0, f1, f2, f3, f4, f5 = 84, 86, 87, 88, 89, 90
    a(f"v_lshrrev_b32 v{t0}, 3, v0")
    a(f"v_lshlrev_b32 v{f0}, 2, v{t0}")
    a(f"v_add_u32 v{f0}, {START}, v{f0}")
    a(f"ds_read2_b32 {vr(f1,2)}, v{f0} offset0:0 offset1:1")
    a(f"v_and_b32 v{f3}, 7, v0")
    a(f"v_mul_u32_u24 v{f4}, {USTR}, v{t0}")
    a(f"v_lshl_add_u32 v{f4}, v{f3}, 4, v{f4}")
    a(f"v_add_u32 v{f4}, {USTG}, v{f4}")
    a(f"v_min_u32 v{f4}, {USTG + 99*USTR}, v{f4}")
    a(f"ds_read_b128 {vr(FU,4)}, v{f4}")
    a(f"v_cvt_f32_u32 v{f5}, s64")
    a(f"v_rcp_f32 v{f5}, v{f5}")
    a(f"s_movk_i32 s58, {NPB*8}")
    a("v_cmp_gt_u32 vcc, s58, v0")
    a(f"v_mul_f32 v{f5}, {f32(2.0**20)}, v{f5}")
    a(f"v_cvt_u32_f32 v{f5}, v{f5}")
    a(f"v_add_u32 v{f5}, 1, v{f5}")
    a(f"v_lshlrev_b32 v{f3}, 5, v{f3}")
    a(f"v_lshl_or_b32 v{f0}, v{t0}, 8, v{f3}")
    a("s_lshl_b32 s59, s64, 5")
    for i in range(4):
        a(f"v_lshlrev_b32 v{XU+2*i}, 16, v{XF+i}")
        a(f"v_and_b32 v{XU+2*i+1}, 0xffff0000, v{XF+i}")
    a("s_waitcnt lgkmcnt(1)")
    a(f"v_cmp_lt_u32 s[70:71], v{f1}, v{f2}")
    for i in range(2):
        a(f"v_subrev_u32 v{f1+i}, {REC}, v{f1+i}")
        a(f"v_lshrrev_b32 v{f4}, 5, v{f1+i}")
        a(f"v_mul_u32_u24 v{f1+i}, v{f4}, v{f5}")
        a(f"v_lshrrev_b32 v{f1+i}, 20, v{f1+i}")
    a(f"v_mul_u32_u24 v{f5}, s64, v{f2}")
    a(f"v_cmp_ne_u32 s[68:69], v{f4}, v{f5}")
    for i in range(8):
        a(f"v_mov_b64 {vr(FD+2*i,2)}, 0")
    a("s_and_b64 s[70:71], s[70:71], s[68:69]")
    a(f"v_sub_u32 v{f2}, v{f2}, v{f1}")
    a(f"v_mad_u32_u24 v{f1}, v{f1}, s59, v{f3}")
    a(f"v_add_u32 v{f1}, {REC}, v{f1}")
    a("s_waitcnt lgkmcnt(0)")
    for i in range(4):
        a(f"v_lshlrev_b32 v{UU+2*i}, 16, v{FU+i}")
        a(f"v_and_b32 v{UU+2*i+1}, 0xffff0000, v{FU+i}")
    a(f"s_mov_b32 s76, {f32(1e-6 * 2.0**SHIFT)}")
    a("s_mov_b32 s77, s76")
    a("s_mov_b64 s[68:69], vcc")
    a("s_waitcnt vmcnt(0)")
    a("s_barrier")
    stamp(a, 8)
    if STAMP: a("s_waitcnt lgkmcnt(0)")
    a("s_and_b64 exec, vcc, s[70:71]")
    a(f"ds_read_b128 {vr(FD,4)}, v{f0} offset:{DEN}")
    a(f"ds_read_b128 {vr(FD+4,4)}, v{f0} offset:{DEN+16}")
    a(f"ds_read_b128 {vr(FN,4)}, v{f0} offset:{NUM}")
    a(f"ds_read_b128 {vr(FN+4,4)}, v{f0} offset:{NUM+16}")
    a("s_mov_b64 exec, vcc")
    a("K2_TAILS:")
    a(f"v_cmpx_lt_i32 vcc, 0, v{f2}")
    a("s_cbranch_execz K2_TAILSDONE")
    a(f"ds_read_b128 {vr(TD,4)}, v{f1}")
    a(f"ds_read_b128 {vr(TD+4,4)}, v{f1} offset:16")
    a(f"ds_read_b128 {vr(TD+8,4)}, v{f1} offset:256")
    a(f"ds_read_b128 {vr(TD+12,4)}, v{f1} offset:272")
    a(f"v_add_u32 v{f1}, s59, v{f1}")
    a(f"v_subrev_u32 v{f2}, 1, v{f2}")
    for i in range(8):
        if i % 2 == 0:
            a(f"s_waitcnt lgkmcnt({3 - i//2})")
        a(f"v_pk_add_f32 {vr(FD+2*i,2)}, {vr(FD+2*i,2)}, {vr(TD+2*i,2)}")
    a("s_branch K2_TAILS")
    a("K2_TAILSDONE:")
    a("s_mov_b64 exec, s[68:69]")
    a("s_or_b32 s58, s60, s63")
    a("s_cmp_lg_u32 s58, 0")
    a("s_cbranch_scc1 K2_MULTI")
    a("K2_FINAL:")
    a("s_waitcnt lgkmcnt(2)")
    for i in range(4):
        a(f"v_pk_add_f32 {vr(FD+2*i,2)}, {vr(FD+2*i,2)}, s[76:77]")
    for i in range(8):
        a(f"v_rcp_f32 v{FD+i}, v{FD+i}")
    a("s_waitcnt lgkmcnt(0)")
    for i in range(4):
        a(f"v_pk_fma_f32 {vr(UU+2*i,2)}, {vr(FN+2*i,2)}, {vr(FD+2*i,2)}, {vr(UU+2*i,2)}")
    for i in range(8):
        a(f"v_max_f32 v{UU+i}, 0, v{UU+i}")
    for i in range(4):
        a(f"v_pk_add_f32 {vr(XU+2*i,2)}, {vr(XU+2*i,2)}, {vr(UU+2*i,2)}")
    for i in range(4):
        a(f"v_cvt_pk_bf16_f32 v{FD+i}, v{XU+2*i}, v{XU+2*i+1}")
    a(f"buffer_store_dwordx4 {vr(FD,4)}, v{vOUT}, s[{SOUT}:{SOUT+3}], s{sOUTO} offen{' sc1' if OPT.get('outsc1') else ''}")
    stamp(a, 9)
    stamp_out(a, 10, pWS, sWV, 0)
    a("K2_END:")
    a("s_endpgm")
    a("K2_MULTI:")
    a("s_lshl_b32 s58, s2, 16")
    a(f"s_add_u32 s58, s58, {WS_SPILL}")
    srd(a, SA, pWS, 65536, add="s58")
    a(f"v_lshlrev_b32 v{f3}, 2, v{vt16}")
    a("s_waitcnt lgkmcnt(0)")
    a("s_cmp_eq_u32 s60, 0")
    a("s_cbranch_scc1 K2_NOSPILLIN")
    for i in range(4):
        a(f"buffer_load_dwordx4 {vr(TD+4*i,4)}, v{f3}, s[{SA}:{SA+3}], 0 offen offset:{16*i} sc1")
    a("s_waitcnt vmcnt(0)")
    for i in range(8):
        a(f"v_pk_add_f32 {vr(FD+2*i,2)}, {vr(FD+2*i,2)}, {vr(TD+2*i,2)}")
    a("K2_NOSPILLIN:")
    a("s_cmp_eq_u32 s63, 0")
    a("s_cbranch_scc1 K2_FINAL")
    for i in range(4):
        a(f"buffer_store_dwordx4 {vr(FD+4*i,4)}, v{f3}, s[{SA}:{SA+3}], 0 offen offset:{16*i} sc1")
    a("s_mov_b64 exec, -1")
    for i in range(2):
        a(f"v_mov_b64 {vr(Z+2*i,2)}, 0")
    a("s_movk_i32 s58, 33")
    a("v_cmp_gt_u32 vcc, s58, v0")
    a("s_mov_b64 exec, vcc")
    a(f"ds_write_b128 v{vt16}, {vr(Z,4)} offset:{HIST}")
    a("s_mov_b64 exec, -1")
    a(f"v_subrev_u32 v{vrem}, s61, v{vrem}")
    a("s_mul_i32 s58, s61, 12")
    a(f"v_add_u32 v{vbase}, s58, v{vbase}")
    a("s_add_u32 s60, s60, 1")
    a("s_setprio 0")
    a("s_waitcnt vmcnt(0) lgkmcnt(0)")
    a("s_barrier")
    a("s_cmp_le_u32 s60, 128")
    a("s_cbranch_scc1 K2_ROUND")
    a("s_endpgm")

HEADER = """; GatedGCN message passing in one launch: 256 resident workgroups, one per (bucket of 98 nodes, feature half).
"""

def descriptor(name, vgpr, sgpr):
    return f""".p2align 6
.amdhsa_kernel {name}
  .amdhsa_next_free_vgpr {vgpr}
  .amdhsa_next_free_sgpr {sgpr}
  .amdhsa_accum_offset {(vgpr+3)//4*4}
  .amdhsa_group_segment_fixed_size 0
  .amdhsa_kernarg_size 96
  .amdhsa_user_sgpr_count 2
  .amdhsa_user_sgpr_kernarg_segment_ptr 1
  .amdhsa_system_sgpr_workgroup_id_x 1
  .amdhsa_float_denorm_mode_32 3
.end_amdhsa_kernel
"""

def main():
    out = HEADER
    out += f"; @launch grid=(256,1,1) block=(1024,1,1) lds={K2_LDS}\n"
    out += '.amdgcn_target "amdgcn-amd-amdhsa--gfx950"\n.text\n'
    a = A()
    gen_f(a)
    out += f".globl {KN}\n.p2align 8\n.type {KN},@function\n" + a.text()
    out += '.section .rodata,"a"\n'
    out += descriptor(KN, 128, 102 if STAMP else 80)
    path = sys.argv[1] if len(sys.argv) > 1 else "fused.s"
    open(path, "w").write(out)

main()
```
